```python
import torch

def _softmax(x, axis=-1):
    return torch.softmax(x, dim=axis)
def _gelu(x):
    return torch.nn.functional.gelu(x, approximate="tanh")
def _silu(x):
    return torch.nn.functional.silu(x)
def _sigmoid(x):
    return torch.sigmoid(x)
def _layernorm(x, axis=-1, eps=1e-5):
    m = x.mean(dim=axis, keepdim=True)
    v = x.var(dim=axis, keepdim=True, unbiased=False)
    return (x - m) / torch.sqrt(v + eps)
def _scatter_add(tgt, idx, src, axis=0):
    return tgt.clone().index_add_(axis, idx, src)
def _segment_sum(src, seg, n):
    out = torch.zeros((n,) + src.shape[1:], dtype=src.dtype)
    return out.index_add_(0, seg, src)
def _pad(x, pw):
    flat = tuple(v for pair in reversed(pw) for v in pair)
    return torch.nn.functional.pad(x, flat)

kernel_name = 'sequential_preLN__gqa_block_cached__dense_activation_squared_relu__decode'

def setup_inputs():

    _w = (lambda a: (lambda t: t.to(torch.bfloat16) if t.is_floating_point() else t)(torch.as_tensor(a)))
    def _A_setup():
        B, Sq, D = 1, 1, 512
        Hq, Hkv, Sk, Dh = 32, 8, 65536, 128
        assert Hq % Hkv == 0, (Hq, Hkv)
        return {
            "x": _w((lambda *s: torch.randn(*s, dtype=torch.bfloat16) * 0.05)(B, Sq, D)),
            "k_cache": _w((lambda *s: torch.randn(*s, dtype=torch.bfloat16) * 3.2)(B, Hkv, Sk, Dh)),
            "v_cache": _w((lambda *s: torch.randn(*s, dtype=torch.bfloat16) * 0.4)(B, Hkv, Sk, Dh)),
            "wq": _w((lambda *s: torch.randn(*s, dtype=torch.bfloat16) * 3.2)(D, Hq * Dh) * (D ** -0.5)),
            "wo": _w((lambda *s: torch.randn(*s, dtype=torch.bfloat16) * 0.4)(Hq * Dh, D) * ((Hq * Dh) ** -0.5)),
        }
    _A_in = _A_setup()

    def _B_setup():
        B, S, D, F = 1, 1, 512, 1792
        return {
            "x": _w((lambda *s: torch.randn(*s, dtype=torch.bfloat16) * 0.05)(B, S, D)),
            "w1": _w((lambda *s: torch.randn(*s, dtype=torch.bfloat16) * 0.05)(D, F)),
            "b1": _w((lambda *s: torch.randn(*s, dtype=torch.bfloat16) * 0.8)(F)),
            "w2": _w((lambda *s: torch.randn(*s, dtype=torch.bfloat16) * 0.05)(F, D)),
            "b2": _w((lambda *s: torch.randn(*s, dtype=torch.bfloat16) * 3.2)(D)),
        }
    _B_in = _B_setup()

    return {
        "A_x": _A_in["x"],
        "A_k_cache": _A_in["k_cache"],
        "A_v_cache": _A_in["v_cache"],
        "A_wq": _A_in["wq"],
        "A_wo": _A_in["wo"],
        "B_x": _B_in["x"],
        "B_w1": _B_in["w1"],
        "B_b1": _B_in["b1"],
        "B_w2": _B_in["w2"],
        "B_b2": _B_in["b2"],
    }

def reference(A_x, A_k_cache, A_v_cache, A_wq, A_wo, B_x, B_w1, B_b1, B_w2, B_b2):
    def _A_ref(x, k_cache, v_cache, wq, wo):
        B, Sq, D = x.shape
        Hq, Dh = 32, 128
        Hkv = k_cache.shape[1]
        rep = Hq // Hkv
        q = (lambda x, *d: x.permute(*d))((x @ wq).reshape(B, Sq, Hq, Dh), 0, 2, 1, 3)
        k = (lambda x, n, axis: torch.repeat_interleave(x, n, dim=axis))(k_cache, rep, axis=1)
        v = (lambda x, n, axis: torch.repeat_interleave(x, n, dim=axis))(v_cache, rep, axis=1)
        scores = torch.einsum("bhqd,bhkd->bhqk", q, k) * (Dh ** -0.5)
        p = _softmax(scores, axis=-1)
        o = torch.einsum("bhqk,bhkd->bhqd", p, v)
        return (lambda x, *d: x.permute(*d))(o, 0, 2, 1, 3).reshape(B, Sq, Hq * Dh) @ wo

    def _B_ref(x, w1, b1, w2, b2):
        h = torch.einsum("bsd,df->bsf", x, w1) + b1
        zero = torch.zeros_like(h)
        r = torch.where(h > zero, h, zero)
        h = r * r
        out = torch.einsum("bsf,fd->bsd", h, w2) + b2
        return out

    x = A_x
    h = x + _A_ref(_layernorm(x, axis=-1), A_k_cache, A_v_cache, A_wq, A_wo)
    h2 = h + _B_ref(_layernorm(h, axis=-1), B_w1, B_b1, B_w2, B_b2)
    return h2
```

```python
import sys

NAME = "sequential_preLN__gqa_block_cached__dense_activation_squared_relu__decode"
out = []
def E(s=""):
    out.append(s)

WS_Q = 0
WS_ACCH = 8192
WS_ACCO = 8192 + 2048
WS_ML = 16384
WS_O = 65536

LOG2E = "0x3fb8aa3b"
SCALE = "0x3db504f3"

def header():
    E("; generated by gen_v1.py")
    E("; @launch kernel=qproj_kernel grid=(64,1,1) block=(256,1,1) lds=12288")
    E("; @launch kernel=attn_kernel grid=(256,1,1) block=(512,1,1) lds=131072")
    E("; @launch kernel=oproj_kernel grid=(256,1,1) block=(256,1,1) lds=4096")
    E("; @launch kernel=mlp_kernel grid=(56,1,1) block=(256,1,1) lds=20480")
    E('.amdgcn_target "amdgcn-amd-amdhsa--gfx950"')
    E(".text")

def kstart(name):
    E(f".globl {name}")
    E(".p2align 8")
    E(f".type {name},@function")
    E(f"{name}:")

def kdesc(name, vgpr):
    acc = (vgpr + 3)//4*4
    E('.section .rodata,"a"')
    E(".p2align 6")
    E(f".amdhsa_kernel {name}")
    E(f"  .amdhsa_next_free_vgpr {vgpr}")
    E("  .amdhsa_next_free_sgpr 96")
    E(f"  .amdhsa_accum_offset {acc}")
    E("  .amdhsa_group_segment_fixed_size 0")
    E("  .amdhsa_kernarg_size 104")
    E("  .amdhsa_user_sgpr_count 2")
    E("  .amdhsa_user_sgpr_kernarg_segment_ptr 1")
    E("  .amdhsa_system_sgpr_workgroup_id_x 1")
    E(".end_amdhsa_kernel")
    E(".text")

def bf16r(v, t):
    E(f"  v_cvt_pk_bf16_f32 v{t}, v{v}, v{v}")
    E(f"  v_lshlrev_b32 v{v}, 16, v{t}")

def red_stage_dpp(op, v, t, ctrl):
    E("  s_nop 1")
    E(f"  v_mov_b32_dpp v{t}, v{v} {ctrl} row_mask:0xf bank_mask:0xf")
    E(f"  {op} v{v}, v{v}, v{t}")

def red_swap(op, v, t, which):
    E(f"  v_mov_b32 v{t}, v{v}")
    E("  s_nop 1")
    E(f"  v_permlane{which}_swap_b32 v{v}, v{t}")
    E(f"  {op} v{v}, v{v}, v{t}")

def wave_reduce(op, v, t):
    red_stage_dpp(op, v, t, "quad_perm:[1,0,3,2]")
    red_stage_dpp(op, v, t, "quad_perm:[2,3,0,1]")
    red_stage_dpp(op, v, t, "row_half_mirror")
    red_stage_dpp(op, v, t, "row_mirror")
    red_swap(op, v, t, 16)
    red_swap(op, v, t, 32)

def layernorm8(x, t):
    s, t1, t2, t3 = t, t+1, t+2, t+3
    E(f"  v_add_f32 v{s}, v{x}, v{x+1}")
    for i in range(2, 8):
        E(f"  v_add_f32 v{s}, v{s}, v{x+i}")
    wave_reduce("v_add_f32", s, t1)
    E(f"  v_mul_f32 v{s}, 0x3b000000, v{s}")
    E(f"  v_sub_f32 v{t1}, v{x}, v{s}")
    E(f"  v_mul_f32 v{t2}, v{t1}, v{t1}")
    for i in range(1, 8):
        E(f"  v_sub_f32 v{t1}, v{x+i}, v{s}")
        E(f"  v_fmac_f32 v{t2}, v{t1}, v{t1}")
    wave_reduce("v_add_f32", t2, t1)
    E(f"  v_mul_f32 v{t2}, 0x3b000000, v{t2}")
    bf16r(t2, t1)
    E(f"  v_add_f32 v{t2}, 0x3727c5ac, v{t2}")
    bf16r(t2, t1)
    E(f"  v_sqrt_f32 v{t2}, v{t2}")
    E("  s_nop 0")
    bf16r(t2, t1)
    E(f"  v_rcp_f32 v{t2}, v{t2}")
    bf16r(s, t1)
    for i in range(8):
        E(f"  v_sub_f32 v{x+i}, v{x+i}, v{s}")
        bf16r(x+i, t1)
        E(f"  v_mul_f32 v{x+i}, v{x+i}, v{t2}")
        bf16r(x+i, t1)

def unpack8(src, dst):
    for k in range(4):
        E(f"  v_lshlrev_b32 v{dst+2*k}, 16, v{src+k}")
        E(f"  v_and_b32 v{dst+2*k+1}, 0xffff0000, v{src+k}")

def fma8(acc, w, sc, t):
    for k in range(4):
        E(f"  v_lshlrev_b32 v{t}, 16, v{w+k}")
        E(f"  v_fmac_f32 v{acc+2*k}, v{sc}, v{t}")
        E(f"  v_and_b32 v{t}, 0xffff0000, v{w+k}")
        E(f"  v_fmac_f32 v{acc+2*k+1}, v{sc}, v{t}")

def qproj():
    kstart("qproj_kernel")
    E("  s_cmp_ge_u32 s2, 64")
    E("  s_cbranch_scc1 L_q_end")
    E("  s_load_dwordx2 s[4:5], s[0:1], 0")
    E("  s_load_dwordx2 s[6:7], s[0:1], 24")
    E("  s_load_dwordx2 s[8:9], s[0:1], 96")
    E("  v_and_b32 v1, 63, v0")
    E("  v_lshrrev_b32 v2, 6, v0")
    E("  v_and_b32 v3, 7, v0")
    E("  v_lshrrev_b32 v4, 3, v0")
    E("  v_lshlrev_b32 v5, 13, v4")
    E("  v_lshl_add_u32 v5, v3, 4, v5")
    E("  s_lshl_b32 s3, s2, 7")
    E("  v_add_u32 v5, s3, v5")
    E("  v_lshlrev_b32 v6, 4, v1")
    E("  s_waitcnt lgkmcnt(0)")
    E("  global_load_dwordx4 v[8:11], v6, s[4:5]")
    for i in range(16):
        E(f"  global_load_dwordx4 v[{32+4*i}:{35+4*i}], v5, s[6:7]")
        if i < 15:
            E(f"  v_add_u32 v5, 0x40000, v5")
    E("  s_cmp_lg_u32 s2, 0")
    E("  s_cbranch_scc1 L_q_nz")
    E("  v_mov_b32 v12, 0")
    E("  v_mov_b32 v13, 0")
    E("  v_mov_b32 v14, 0")
    E("  v_mov_b32 v15, 0")
    E("  v_lshlrev_b32 v7, 4, v0")
    E(f"  v_add_u32 v7, {WS_ACCH}, v7")
    E("  global_store_dwordx4 v7, v[12:15], s[8:9]")
    E("L_q_nz:")
    E("  s_waitcnt vmcnt(16)")
    unpack8(8, 16)
    layernorm8(16, 24)
    E("  v_lshlrev_b32 v7, 11, v2")
    E("  v_lshl_add_u32 v28, v1, 5, v7")
    E("  ds_write_b128 v28, v[16:19]")
    E("  ds_write_b128 v28, v[20:23] offset:16")
    E("  v_lshl_add_u32 v28, v4, 2, v7")
    E("  s_waitcnt lgkmcnt(0)")
    for i in range(16):
        E(f"  ds_read_b32 v{96+i}, v28 offset:{i*128}")
    for k in range(8):
        E(f"  v_mov_b32 v{112+k}, 0")
    E("  s_waitcnt lgkmcnt(0)")
    for i in range(16):
        E(f"  s_waitcnt vmcnt({15-i})")
        fma8(112, 32+4*i, 96+i, 24)
    for k in range(8):
        red_stage_dpp("v_add_f32", 112+k, 24, "row_ror:8")
        red_swap("v_add_f32", 112+k, 24, 16)
        red_swap("v_add_f32", 112+k, 24, 32)
    E("  v_lshlrev_b32 v7, 8, v2")
    E("  v_lshl_add_u32 v7, v1, 5, v7")
    E("  v_add_u32 v7, 8192, v7")
    E("  v_cmp_gt_u32 vcc, 8, v1")
    E("  s_and_saveexec_b64 s[10:11], vcc")
    E("  ds_write_b128 v7, v[112:115]")
    E("  ds_write_b128 v7, v[116:119] offset:16")
    E("  s_mov_b64 exec, s[10:11]")
    E("  s_waitcnt lgkmcnt(0)")
    E("  s_barrier")
    E("  v_cmp_gt_u32 vcc, 64, v0")
    E("  s_and_saveexec_b64 s[10:11], vcc")
    E("  s_cbranch_execz L_q_end")
    E("  v_lshlrev_b32 v7, 2, v0")
    E("  ds_read_b32 v8, v7 offset:8192")
    E("  ds_read_b32 v9, v7 offset:8448")
    E("  ds_read_b32 v10, v7 offset:8704")
    E("  ds_read_b32 v11, v7 offset:8960")
    E("  s_waitcnt lgkmcnt(0)")
    E("  v_add_f32 v8, v8, v9")
    E("  v_add_f32 v10, v10, v11")
    E("  v_add_f32 v8, v8, v10")
    E("  v_cvt_pk_bf16_f32 v8, v8, v8")
    E("  v_lshlrev_b32 v7, 1, v0")
    E("  v_add_u32 v7, s3, v7")
    E("  global_store_short v7, v8, s[8:9]")
    E("L_q_end:")
    E("  s_endpgm")
    kdesc("qproj_kernel", 128)

def attn():
    kstart("attn_kernel")
    Q, K0, K1, O, S, P, VF, TA = 4, 20, 52, 84, 116, 124, 128, 144
    KO0, KO1, VO = 152, 153, 154
    M, L, T = 158, 159, 160
    E("  s_cmp_ge_u32 s2, 256")
    E("  s_cbranch_scc1 L_a_end")
    E("  s_load_dwordx2 s[4:5], s[0:1], 8")
    E("  s_load_dwordx2 s[6:7], s[0:1], 16")
    E("  s_load_dwordx2 s[8:9], s[0:1], 96")
    E("  v_and_b32 v1, 63, v0")
    E("  v_lshrrev_b32 v2, 6, v0")
    E("  s_nop 0")
    E("  v_readfirstlane_b32 s12, v2")
    E("  s_lshr_b32 s13, s2, 5")
    E("  s_and_b32 s14, s2, 31")
    E("  v_and_b32 v2, 15, v1")
    E("  v_lshrrev_b32 v3, 4, v1")
    E("  v_and_b32 v160, 3, v2")
    E("  v_lshlrev_b32 v160, 8, v160")
    E("  v_lshl_add_u32 v160, v3, 4, v160")
    E("  s_lshl_b32 s15, s13, 10")
    E("  v_add_u32 v160, s15, v160")
    E(f"  v_lshlrev_b32 v{KO0}, 8, v2")
    E(f"  v_lshl_add_u32 v{KO0}, v3, 4, v{KO0}")
    E(f"  v_add_u32 v{KO1}, 4096, v{KO0}")
    E(f"  v_lshlrev_b32 v161, 1, v3")
    E(f"  v_xor_b32 v162, v2, v161")
    E(f"  v_lshlrev_b32 v162, 4, v162")
    E(f"  v_lshl_add_u32 v{VO}, v3, 8, v162")
    E(f"  v_lshlrev_b32 v162, 4, v2")
    E(f"  v_lshlrev_b32 v163, 5, v3")
    E(f"  v_xor_b32 v162, v162, v163")
    E(f"  v_xor_b32 v162, 128, v162")
    E(f"  v_lshl_add_u32 v{VO+1}, v3, 8, v162")
    E(f"  v_add_u32 v{VO+2}, 4096, v{VO}")
    E(f"  v_add_u32 v{VO+3}, 4096, v{VO+1}")
    E("  v_lshrrev_b32 v161, 2, v2")
    E("  v_lshl_add_u32 v161, v3, 2, v161")
    E("  v_and_b32 v162, 7, v161")
    E("  v_and_b32 v163, 3, v2")
    E("  v_lshlrev_b32 v164, 8, v161")
    E("  v_lshl_add_u32 v164, v163, 3, v164")
    E("  s_lshl_b32 s16, s12, 14")
    E("  v_add_u32 v164, s16, v164")
    for nb in range(8):
        E(f"  v_xor_b32 v165, {nb}, v162")
        E(f"  v_lshl_add_u32 v{TA+nb}, v165, 5, v164")
    E("  s_lshl_b32 s17, s13, 24")
    E("  s_lshl_b32 s18, s14, 19")
    E("  s_add_u32 s17, s17, s18")
    E("  s_lshl_b32 s18, s12, 13")
    E("  s_add_u32 s17, s17, s18")
    E("  s_waitcnt lgkmcnt(0)")
    E("  s_add_u32 s20, s4, s17")
    E("  s_addc_u32 s21, s5, 0")
    E("  s_add_u32 s22, s6, s17")
    E("  s_addc_u32 s23, s7, 0")
    for j in range(4):
        E(f"  global_load_dwordx4 v[{Q+4*j}:{Q+4*j+3}], v160, s[8:9] offset:{j*64}")
    for k in range(32):
        E(f"  v_mov_b32 v{O+k}, 0")
    E(f"  v_mov_b32 v{M}, 0xf149f2ca")
    E(f"  v_mov_b32 v{L}, 0")

    def issue(t):
        kb = K0 if t % 2 == 0 else K1
        for blk in range(2):
            for j in range(4):
                r = kb + blk*16 + j*4
                E(f"  global_load_dwordx4 v[{r}:{r+3}], v{KO0+blk}, s[20:21] offset:{j*64}")
        for half in range(2):
            E(f"  s_add_u32 s24, s16, {(t%2)*8192 + half*4096}")
            E("  s_mov_b32 m0, s24")
            E("  s_nop 0")
            for ii in range(4):
                i = half*4 + ii
                vo = VO + (i % 2) + 2*half
                off = (ii//2)*2048 + (1024 if i % 2 else 0)
                goff = (ii//2)*2048
                if i % 2 == 0:
                    E(f"  global_load_lds_dwordx4 v{vo}, s[22:23] offset:{off}")
                else:
                    E(f"  global_load_lds_dwordx4 v{vo}, s[22:23] offset:{off}")
        E("  s_add_u32 s20, s20, 0x10000")
        E("  s_addc_u32 s21, s21, 0")
        E("  s_add_u32 s22, s22, 0x10000")
        E("  s_addc_u32 s23, s23, 0")

    issue(0)
    for t in range(8):
        if t < 7:
            issue(t+1)
            E("  s_waitcnt vmcnt(16)")
        else:
            E("  s_waitcnt vmcnt(0)")
        kb = K0 if t % 2 == 0 else K1
        for blk in range(2):
            for j in range(4):
                r = kb + blk*16 + j*4
                c = "0" if j == 0 else f"v[{S+4*blk}:{S+4*blk+3}]"
                E(f"  v_mfma_f32_16x16x32_bf16 v[{S+4*blk}:{S+4*blk+3}], v[{r}:{r+3}], v[{Q+4*j}:{Q+4*j+3}], {c}")
        sl = (t % 2)*8192
        def trreads(nb0):
            for q in range(4):
                nb = nb0 + q
                E(f"  ds_read_b64_tr_b16 v[{VF+4*q}:{VF+4*q+1}], v{TA+nb} offset:{sl}")
                E(f"  ds_read_b64_tr_b16 v[{VF+4*q+2}:{VF+4*q+3}], v{TA+nb} offset:{sl+4096}")
        trreads(0)
        E("  s_nop 7")
        for k in range(8):
            bf16r(S+k, T)
            E(f"  v_mul_f32 v{S+k}, {SCALE}, v{S+k}")
            bf16r(S+k, T)
        E(f"  v_max3_f32 v{T}, v{S}, v{S+1}, v{S+2}")
        E(f"  v_max3_f32 v{T}, v{S+3}, v{S+4}, v{T}")
        E(f"  v_max3_f32 v{T}, v{S+5}, v{S+6}, v{T}")
        E(f"  v_max_f32 v{T}, v{S+7}, v{T}")
        red_swap("v_max_f32", T, T+1, 16)
        red_swap("v_max_f32", T, T+1, 32)
        E(f"  v_max_f32 v{T}, v{T}, v{M}")
        E(f"  v_sub_f32 v{T+1}, v{M}, v{T}")
        E(f"  v_mul_f32 v{T+1}, {LOG2E}, v{T+1}")
        E(f"  v_exp_f32 v{T+1}, v{T+1}")
        E(f"  v_mov_b32 v{M}, v{T}")
        for k in range(8):
            E(f"  v_sub_f32 v{S+k}, v{S+k}, v{T}")
            E(f"  v_mul_f32 v{S+k}, {LOG2E}, v{S+k}")
            E(f"  v_exp_f32 v{S+k}, v{S+k}")
        E(f"  v_mul_f32 v{L}, v{L}, v{T+1}")
        for k in range(4):
            E(f"  v_cvt_pk_bf16_f32 v{P+k}, v{S+2*k}, v{S+2*k+1}")
        for k in range(8):
            E(f"  v_add_f32 v{L}, v{L}, v{S+k}")
        for i in range(4):
            E(f"  v_readlane_b32 s{30+i}, v{T+1}, {i}")
        E("  s_nop 1")
        for nb in range(8):
            for i in range(4):
                E(f"  v_mul_f32 v{O+4*nb+i}, s{30+i}, v{O+4*nb+i}")
        E("  s_waitcnt lgkmcnt(0)")
        for q in range(4):
            E(f"  v_mfma_f32_16x16x32_bf16 v[{O+4*q}:{O+4*q+3}], v[{P}:{P+3}], v[{VF+4*q}:{VF+4*q+3}], v[{O+4*q}:{O+4*q+3}]")
        trreads(4)
        E("  s_waitcnt lgkmcnt(0)")
        for q in range(4):
            nb = 4 + q
            E(f"  v_mfma_f32_16x16x32_bf16 v[{O+4*nb}:{O+4*nb+3}], v[{P}:{P+3}], v[{VF+4*q}:{VF+4*q+3}], v[{O+4*nb}:{O+4*nb+3}]")
        E("  s_nop 7")
    red_swap("v_add_f32", L, T, 16)
    red_swap("v_add_f32", L, T, 32)
    E("  s_nop 7")
    E(f"  v_lshl_add_u32 v{T}, v1, 2, s16")
    E(f"  v_lshl_add_u32 v{T+1}, v1, 3, s16")
    E("  v_cmp_gt_u32 vcc, 16, v1")
    E("  s_and_saveexec_b64 s[26:27], vcc")
    for nb in range(8):
        for i in range(4):
            E(f"  ds_write_b32 v{T}, v{O+4*nb+i} offset:{i*512 + nb*64}")
    E("  s_mov_b64 exec, s[26:27]")
    E("  v_cmp_gt_u32 vcc, 4, v1")
    E("  s_and_saveexec_b64 s[26:27], vcc")
    E(f"  ds_write_b64 v{T+1}, v[{M}:{L}] offset:2048")
    E("  s_mov_b64 exec, s[26:27]")
    E("  s_waitcnt lgkmcnt(0)")
    E("  s_barrier")
    E("  v_lshrrev_b32 v2, 7, v0")
    E("  v_lshlrev_b32 v3, 3, v2")
    E("  v_lshlrev_b32 v4, 2, v0")
    E("  v_add_u32 v12, 0x10000, v3")
    E("  v_add_u32 v13, 0x10000, v4")
    for w in range(8):
        E(f"  ds_read_b64 v[{20+2*w}:{21+2*w}], v{3 if w<4 else 12} offset:{(w%4)*16384+2048}")
    for w in range(8):
        E(f"  ds_read_b32 v{40+w}, v{4 if w<4 else 13} offset:{(w%4)*16384}")
    E("  s_waitcnt lgkmcnt(0)")
    E("  v_max3_f32 v5, v20, v22, v24")
    E("  v_max3_f32 v5, v26, v28, v5")
    E("  v_max3_f32 v5, v30, v32, v5")
    E("  v_max_f32 v5, v34, v5")
    E("  v_mov_b32 v6, 0")
    E("  v_mov_b32 v7, 0")
    for w in range(8):
        E(f"  v_sub_f32 v8, v{20+2*w}, v5")
        E(f"  v_mul_f32 v8, {LOG2E}, v8")
        E(f"  v_exp_f32 v8, v8")
        E("  s_nop 0")
        E(f"  v_fmac_f32 v6, v8, v{40+w}")
        E(f"  v_fmac_f32 v7, v8, v{21+2*w}")
    E("  s_lshl_b32 s24, s13, 2")
    E("  v_add_u32 v9, s24, v2")
    E("  v_lshlrev_b32 v9, 5, v9")
    E("  v_add_u32 v9, s14, v9")
    E("  v_and_b32 v10, 127, v0")
    E("  v_lshlrev_b32 v11, 9, v9")
    E("  v_lshl_add_u32 v11, v10, 2, v11")
    E(f"  v_add_u32 v11, {WS_O}, v11")
    E("  global_store_dword v11, v6, s[8:9]")
    E("  v_cmp_eq_u32 vcc, 0, v10")
    E("  s_and_saveexec_b64 s[26:27], vcc")
    E("  v_lshlrev_b32 v11, 3, v9")
    E(f"  v_add_u32 v11, {WS_ML}, v11")
    E("  v_mov_b32 v6, v5")
    E("  global_store_dwordx2 v11, v[6:7], s[8:9]")
    E("L_a_end:")
    E("  s_endpgm")
    kdesc("attn_kernel", 176)

def oproj():
    kstart("oproj_kernel")
    E("  s_cmp_ge_u32 s2, 256")
    E("  s_cbranch_scc1 L_o_end")
    E("  s_load_dwordx2 s[6:7], s[0:1], 32")
    E("  s_load_dwordx2 s[8:9], s[0:1], 96")
    E("  s_lshr_b32 s12, s2, 3")
    E("  s_and_b32 s13, s2, 7")
    E("  v_and_b32 v1, 63, v0")
    E("  v_lshrrev_b32 v2, 6, v0")
    E("  s_nop 0")
    E("  v_readfirstlane_b32 s14, v2")
    E("  v_and_b32 v3, 7, v0")
    E("  v_lshrrev_b32 v4, 3, v0")
    E("  s_lshl_b32 s15, s12, 17")
    E("  s_lshl_b32 s16, s13, 7")
    E("  s_add_u32 s15, s15, s16")
    E("  v_lshlrev_b32 v5, 10, v4")
    E("  v_lshl_add_u32 v5, v3, 4, v5")
    E("  v_add_u32 v5, s15, v5")
    E("  v_and_b32 v6, 31, v1")
    E("  v_lshlrev_b32 v6, 3, v6")
    E("  s_lshl_b32 s17, s12, 8")
    E(f"  s_add_u32 s17, s17, {WS_ML}")
    E("  v_add_u32 v6, s17, v6")
    E("  v_and_b32 v7, 127, v0")
    E("  v_lshrrev_b32 v8, 7, v0")
    E("  v_lshlrev_b32 v9, 13, v8")
    E("  v_lshl_add_u32 v9, v7, 2, v9")
    E("  s_lshl_b32 s18, s12, 14")
    E(f"  s_add_u32 s18, s18, {WS_O}")
    E("  v_add_u32 v9, s18, v9")
    E("  s_waitcnt lgkmcnt(0)")
    E("  global_load_dwordx2 v[10:11], v6, s[8:9]")
    for k in range(8):
        E(f"  global_load_dword v{48+k}, v9, s[8:9] offset:{k*512}")
    E("  v_add_u32 v9, 4096, v9")
    for k in range(8):
        E(f"  global_load_dword v{56+k}, v9, s[8:9] offset:{k*512}")
    for i in range(4):
        E(f"  global_load_dwordx4 v[{32+4*i}:{35+4*i}], v5, s[6:7]")
        if i < 3:
            E("  v_add_u32 v5, 0x8000, v5")
    E("  s_waitcnt vmcnt(20)")
    E("  v_mov_b32 v12, v10")
    wave_reduce("v_max_f32", 12, 13)
    E("  v_sub_f32 v12, v10, v12")
    E(f"  v_mul_f32 v12, {LOG2E}, v12")
    E("  v_exp_f32 v12, v12")
    E("  s_nop 0")
    E("  v_mul_f32 v13, v12, v11")
    E("  v_cmp_gt_u32 vcc, 32, v1")
    E("  s_nop 1")
    E("  v_cndmask_b32 v13, 0, v13, vcc")
    wave_reduce("v_add_f32", 13, 14)
    E("  v_rcp_f32 v13, v13")
    E("  s_nop 0")
    E("  v_mul_f32 v12, v12, v13")
    E("  s_lshr_b32 s19, s14, 1")
    E("  s_lshl_b32 s19, s19, 4")
    E("  v_mov_b32 v14, 0")
    E("  s_waitcnt vmcnt(4)")
    for k in range(16):
        E(f"  s_add_u32 s20, s19, {k}")
        E("  s_nop 3")
        E("  v_readlane_b32 s21, v12, s20")
        E("  s_nop 1")
        E(f"  v_fmac_f32 v14, s21, v{48+k}")
    E("  v_lshlrev_b32 v15, 2, v0")
    E("  ds_write_b32 v15, v14")
    E("  s_waitcnt lgkmcnt(0)")
    E("  s_barrier")
    E("  v_lshlrev_b32 v15, 2, v4")
    for i in range(4):
        E(f"  ds_read_b32 v{16+i}, v15 offset:{i*128}")
        E(f"  ds_read_b32 v{20+i}, v15 offset:{i*128+512}")
    for k in range(8):
        E(f"  v_mov_b32 v{64+k}, 0")
    E("  s_waitcnt lgkmcnt(0)")
    for i in range(4):
        E(f"  v_add_f32 v{16+i}, v{16+i}, v{20+i}")
        bf16r(16+i, 24)
    E("  s_waitcnt vmcnt(0)")
    for i in range(4):
        fma8(64, 32+4*i, 16+i, 24)
    for k in range(8):
        red_stage_dpp("v_add_f32", 64+k, 24, "row_ror:8")
        red_swap("v_add_f32", 64+k, 24, 16)
        red_swap("v_add_f32", 64+k, 24, 32)
    E("  v_lshlrev_b32 v7, 8, v2")
    E("  v_lshl_add_u32 v7, v1, 5, v7")
    E("  v_add_u32 v7, 1024, v7")
    E("  v_cmp_gt_u32 vcc, 8, v1")
    E("  s_and_saveexec_b64 s[10:11], vcc")
    E("  ds_write_b128 v7, v[64:67]")
    E("  ds_write_b128 v7, v[68:71] offset:16")
    E("  s_mov_b64 exec, s[10:11]")
    E("  s_waitcnt lgkmcnt(0)")
    E("  s_barrier")
    E("  v_cmp_gt_u32 vcc, 64, v0")
    E("  s_and_saveexec_b64 s[10:11], vcc")
    E("  s_cbranch_execz L_o_end")
    E("  v_lshlrev_b32 v7, 2, v0")
    E("  ds_read_b32 v8, v7 offset:1024")
    E("  ds_read_b32 v9, v7 offset:1280")
    E("  ds_read_b32 v10, v7 offset:1536")
    E("  ds_read_b32 v11, v7 offset:1792")
    E("  s_waitcnt lgkmcnt(0)")
    E("  v_add_f32 v8, v8, v9")
    E("  v_add_f32 v10, v10, v11")
    E("  v_add_f32 v8, v8, v10")
    E("  s_lshl_b32 s16, s13, 8")
    E(f"  s_add_u32 s16, s16, {WS_ACCH}")
    E("  v_add_u32 v7, s16, v7")
    E("  global_atomic_add_f32 v7, v8, s[8:9]")
    E("L_o_end:")
    E("  s_endpgm")
    kdesc("oproj_kernel", 80)

def mlp():
    NW = 56
    kstart("mlp_kernel")
    E(f"  s_cmp_ge_u32 s2, {NW}")
    E("  s_cbranch_scc1 L_m_end")
    E("  s_load_dwordx2 s[4:5], s[0:1], 0")
    E("  s_load_dwordx2 s[6:7], s[0:1], 48")
    E("  s_load_dwordx2 s[10:11], s[0:1], 56")
    E("  s_load_dwordx2 s[12:13], s[0:1], 64")
    E("  s_load_dwordx2 s[14:15], s[0:1], 72")
    E("  s_load_dwordx2 s[16:17], s[0:1], 80")
    E("  s_load_dwordx2 s[18:19], s[0:1], 88")
    E("  s_load_dwordx2 s[8:9], s[0:1], 96")
    E("  v_and_b32 v1, 63, v0")
    E("  v_lshrrev_b32 v2, 6, v0")
    E("  v_and_b32 v3, 3, v0")
    E("  v_lshrrev_b32 v4, 2, v0")
    E("  s_movk_i32 s20, 3584")
    E("  v_mul_lo_u32 v5, v4, s20")
    E("  v_lshl_add_u32 v5, v3, 4, v5")
    E("  s_lshl_b32 s21, s2, 6")
    E("  v_add_u32 v5, s21, v5")
    E("  v_lshlrev_b32 v6, 13, v2")
    E("  v_lshl_add_u32 v6, v1, 4, v6")
    E("  s_lshl_b32 s22, s2, 15")
    E("  v_add_u32 v6, s22, v6")
    E("  v_lshlrev_b32 v7, 4, v1")
    E("  v_lshlrev_b32 v8, 5, v1")
    E(f"  v_add_u32 v8, {WS_ACCH}, v8")
    E("  v_and_b32 v9, 31, v0")
    E("  v_lshlrev_b32 v9, 1, v9")
    E("  v_add_u32 v9, s21, v9")
    E("  s_waitcnt lgkmcnt(0)")
    E("  global_load_ushort v10, v9, s[10:11]")
    E("  global_load_dwordx4 v[12:15], v7, s[4:5]")
    E("  global_load_dwordx4 v[16:19], v8, s[8:9]")
    E("  global_load_dwordx4 v[20:23], v8, s[8:9] offset:16")
    for i in range(8):
        E(f"  global_load_dwordx4 v[{40+4*i}:{43+4*i}], v5, s[6:7]")
        if i < 7:
            E(f"  v_add_u32 v5, {64*3584}, v5")
    for i in range(8):
        E(f"  global_load_dwordx4 v[{72+4*i}:{75+4*i}], v6, s[12:13] offset:{0}")
        if i < 7:
            E(f"  v_add_u32 v6, 1024, v6")
    E("  s_waitcnt vmcnt(16)")
    unpack8(12, 24)
    for k in range(8):
        bf16r(16+k, 32)
        E(f"  v_add_f32 v{16+k}, v{16+k}, v{24+k}")
        bf16r(16+k, 32)
        E(f"  v_mov_b32 v{24+k}, v{16+k}")
    layernorm8(16, 32)
    E("  v_lshlrev_b32 v36, 11, v2")
    E("  v_lshl_add_u32 v37, v1, 5, v36")
    E("  ds_write_b128 v37, v[16:19]")
    E("  ds_write_b128 v37, v[20:23] offset:16")
    E("  v_lshl_add_u32 v37, v4, 2, v36")
    E("  s_waitcnt lgkmcnt(0)")
    for i in range(8):
        E(f"  ds_read_b32 v{104+i}, v37 offset:{i*256}")
    for k in range(8):
        E(f"  v_mov_b32 v{112+k}, 0")
    E("  s_waitcnt lgkmcnt(0)")
    for i in range(8):
        E(f"  s_waitcnt vmcnt({15-i})")
        fma8(112, 40+4*i, 104+i, 32)
    for k in range(8):
        red_stage_dpp("v_add_f32", 112+k, 32, "row_ror:4")
        red_stage_dpp("v_add_f32", 112+k, 32, "row_ror:8")
        red_swap("v_add_f32", 112+k, 32, 16)
        red_swap("v_add_f32", 112+k, 32, 32)
    E("  v_lshlrev_b32 v36, 7, v2")
    E("  v_lshl_add_u32 v36, v1, 5, v36")
    E("  v_add_u32 v36, 8192, v36")
    E("  v_cmp_gt_u32 vcc, 4, v1")
    E("  s_and_saveexec_b64 s[24:25], vcc")
    E("  ds_write_b128 v36, v[112:115]")
    E("  ds_write_b128 v36, v[116:119] offset:16")
    E("  s_mov_b64 exec, s[24:25]")
    E("  s_waitcnt lgkmcnt(0)")
    E("  s_barrier")
    E("  v_cmp_gt_u32 vcc, 32, v0")
    E("  s_and_saveexec_b64 s[24:25], vcc")
    E("  v_lshlrev_b32 v36, 2, v0")
    E("  ds_read_b32 v32, v36 offset:8192")
    E("  ds_read_b32 v33, v36 offset:8320")
    E("  ds_read_b32 v34, v36 offset:8448")
    E("  ds_read_b32 v35, v36 offset:8576")
    E("  s_waitcnt vmcnt(0) lgkmcnt(0)")
    E("  v_add_f32 v32, v32, v33")
    E("  v_add_f32 v34, v34, v35")
    E("  v_add_f32 v32, v32, v34")
    bf16r(32, 33)
    E("  v_lshlrev_b32 v10, 16, v10")
    E("  v_add_f32 v32, v32, v10")
    bf16r(32, 33)
    E("  v_max_f32 v32, 0, v32")
    E("  v_mul_f32 v32, v32, v32")
    bf16r(32, 33)
    E("  ds_write_b32 v36, v32 offset:8704")
    E("  s_mov_b64 exec, s[24:25]")
    E("  s_waitcnt lgkmcnt(0)")
    E("  s_barrier")
    E("  v_lshlrev_b32 v36, 5, v2")
    for i in range(8):
        E(f"  ds_read_b32 v{104+i}, v36 offset:{8704+i*4}")
    for k in range(8):
        E(f"  v_mov_b32 v{112+k}, 0")
    E("  s_waitcnt vmcnt(0) lgkmcnt(0)")
    for i in range(8):
        fma8(112, 72+4*i, 104+i, 32)
    E("  v_lshlrev_b32 v36, 11, v2")
    E("  v_lshl_add_u32 v36, v1, 5, v36")
    E("  ds_write_b128 v36, v[112:115] offset:12288")
    E("  ds_write_b128 v36, v[116:119] offset:12304")
    E("  s_waitcnt lgkmcnt(0)")
    E("  s_barrier")
    E("  v_lshlrev_b32 v36, 3, v0")
    E("  ds_read_b64 v[32:33], v36 offset:12288")
    E("  ds_read_b64 v[34:35], v36 offset:14336")
    E("  ds_read_b64 v[112:113], v36 offset:16384")
    E("  ds_read_b64 v[114:115], v36 offset:18432")
    E("  s_waitcnt lgkmcnt(0)")
    E("  v_add_f32 v32, v32, v34")
    E("  v_add_f32 v33, v33, v35")
    E("  v_add_f32 v112, v112, v114")
    E("  v_add_f32 v113, v113, v115")
    E("  v_add_f32 v32, v32, v112")
    E("  v_add_f32 v33, v33, v113")
    E(f"  v_add_u32 v37, {WS_ACCO}, v36")
    E("  global_atomic_add_f32 v37, v32, s[8:9]")
    E("  global_atomic_add_f32 v37, v33, s[8:9] offset:4")
    E("  s_waitcnt vmcnt(0)")
    E("  s_barrier")
    E("  v_mov_b32 v38, 0")
    E("  v_mov_b32 v39, 1")
    E("  v_cmp_eq_u32 vcc, 0, v0")
    E("  s_and_saveexec_b64 s[24:25], vcc")
    E("  global_atomic_add v38, v38, v39, s[18:19] sc0")
    E("  s_waitcnt vmcnt(0)")
    E("  v_mov_b32 v39, 0")
    E("  ds_write_b32 v39, v38 offset:9000")
    E("  s_mov_b64 exec, s[24:25]")
    E("  s_waitcnt lgkmcnt(0)")
    E("  s_barrier")
    E("  v_mov_b32 v39, 0")
    E("  ds_read_b32 v38, v39 offset:9000")
    E("  s_waitcnt lgkmcnt(0)")
    E("  v_readfirstlane_b32 s26, v38")
    E(f"  s_cmp_lg_u32 s26, {NW-1}")
    E("  s_cbranch_scc1 L_m_end")
    E("  v_readfirstlane_b32 s27, v2")
    E("  s_cmp_lg_u32 s27, 0")
    E("  s_cbranch_scc1 L_m_end")
    E("  v_lshlrev_b32 v36, 5, v1")
    E(f"  v_add_u32 v36, {WS_ACCO}, v36")
    E("  v_mov_b32 v39, 0")
    for k in range(8):
        E(f"  global_atomic_add_f32 v{112+k}, v36, v39, s[8:9] offset:{4*k} sc0")
    E("  global_load_dwordx4 v[12:15], v7, s[14:15]")
    E("  s_waitcnt vmcnt(0)")
    unpack8(12, 40)
    for k in range(8):
        bf16r(112+k, 32)
        E(f"  v_add_f32 v{112+k}, v{112+k}, v{40+k}")
        bf16r(112+k, 32)
        E(f"  v_add_f32 v{112+k}, v{112+k}, v{24+k}")
    for k in range(4):
        E(f"  v_cvt_pk_bf16_f32 v{12+k}, v{112+2*k}, v{113+2*k}")
    E("  global_store_dwordx4 v7, v[12:15], s[16:17]")
    E("L_m_end:")
    E("  s_endpgm")
    kdesc("mlp_kernel", 128)

header()
qproj()
attn()
oproj()
mlp()
open(sys.argv[1] if len(sys.argv) > 1 else f"cdna_kernels/{NAME}.s", "w").write("\n".join(out) + "\n")
```

```python
import sys, os
NT = " nt" if os.environ.get("NT","0")=="1" else ""

NAME = "sequential_preLN__gqa_block_cached__dense_activation_squared_relu__decode"
out = []
def E(s=""):
    out.append(s)

WS_Q = 0
WS_ACCH = 8192
WS_ACCO = 8192 + 2048
WS_ML = 16384
WS_O = 65536

LOG2E = "0x3fb8aa3b"
SCALE = "0x3db504f3"

def header():
    E("; generated by gen_v1.py")
    E("; @launch kernel=qproj_kernel grid=(64,1,1) block=(256,1,1) lds=12288")
    E("; @launch kernel=attn_kernel grid=(256,1,1) block=(512,1,1) lds=131072")
    E("; @launch kernel=oproj_kernel grid=(256,1,1) block=(256,1,1) lds=4096")
    E("; @launch kernel=mlp_kernel grid=(56,1,1) block=(256,1,1) lds=20480")
    E('.amdgcn_target "amdgcn-amd-amdhsa--gfx950"')
    E(".text")

def kstart(name):
    E(f".globl {name}")
    E(".p2align 8")
    E(f".type {name},@function")
    E(f"{name}:")

def kdesc(name, vgpr):
    acc = (vgpr + 3)//4*4
    E('.section .rodata,"a"')
    E(".p2align 6")
    E(f".amdhsa_kernel {name}")
    E(f"  .amdhsa_next_free_vgpr {vgpr}")
    E("  .amdhsa_next_free_sgpr 96")
    E(f"  .amdhsa_accum_offset {acc}")
    E("  .amdhsa_group_segment_fixed_size 0")
    E("  .amdhsa_kernarg_size 104")
    E("  .amdhsa_user_sgpr_count 2")
    E("  .amdhsa_user_sgpr_kernarg_segment_ptr 1")
    E("  .amdhsa_system_sgpr_workgroup_id_x 1")
    E(".end_amdhsa_kernel")
    E(".text")

def bf16r(v, t):
    E(f"  v_cvt_pk_bf16_f32 v{t}, v{v}, v{v}")
    E(f"  v_lshlrev_b32 v{v}, 16, v{t}")

def red_stage_dpp(op, v, t, ctrl):
    E("  s_nop 1")
    E(f"  v_mov_b32_dpp v{t}, v{v} {ctrl} row_mask:0xf bank_mask:0xf")
    E(f"  {op} v{v}, v{v}, v{t}")

def red_swap(op, v, t, which):
    E(f"  v_mov_b32 v{t}, v{v}")
    E("  s_nop 1")
    E(f"  v_permlane{which}_swap_b32 v{v}, v{t}")
    E(f"  {op} v{v}, v{v}, v{t}")

def wave_reduce(op, v, t):
    red_stage_dpp(op, v, t, "quad_perm:[1,0,3,2]")
    red_stage_dpp(op, v, t, "quad_perm:[2,3,0,1]")
    red_stage_dpp(op, v, t, "row_half_mirror")
    red_stage_dpp(op, v, t, "row_mirror")
    red_swap(op, v, t, 16)
    red_swap(op, v, t, 32)

def layernorm8(x, t):
    s, t1, t2, t3 = t, t+1, t+2, t+3
    E(f"  v_add_f32 v{s}, v{x}, v{x+1}")
    for i in range(2, 8):
        E(f"  v_add_f32 v{s}, v{s}, v{x+i}")
    wave_reduce("v_add_f32", s, t1)
    E(f"  v_mul_f32 v{s}, 0x3b000000, v{s}")
    E(f"  v_sub_f32 v{t1}, v{x}, v{s}")
    E(f"  v_mul_f32 v{t2}, v{t1}, v{t1}")
    for i in range(1, 8):
        E(f"  v_sub_f32 v{t1}, v{x+i}, v{s}")
        E(f"  v_fmac_f32 v{t2}, v{t1}, v{t1}")
    wave_reduce("v_add_f32", t2, t1)
    E(f"  v_mul_f32 v{t2}, 0x3b000000, v{t2}")
    bf16r(t2, t1)
    E(f"  v_add_f32 v{t2}, 0x3727c5ac, v{t2}")
    bf16r(t2, t1)
    E(f"  v_sqrt_f32 v{t2}, v{t2}")
    E("  s_nop 0")
    bf16r(t2, t1)
    E(f"  v_rcp_f32 v{t2}, v{t2}")
    bf16r(s, t1)
    for i in range(8):
        E(f"  v_sub_f32 v{x+i}, v{x+i}, v{s}")
        bf16r(x+i, t1)
        E(f"  v_mul_f32 v{x+i}, v{x+i}, v{t2}")
        bf16r(x+i, t1)

def unpack8(src, dst):
    for k in range(4):
        E(f"  v_lshlrev_b32 v{dst+2*k}, 16, v{src+k}")
        E(f"  v_and_b32 v{dst+2*k+1}, 0xffff0000, v{src+k}")

def fma8(acc, w, sc, t):
    for k in range(4):
        E(f"  v_lshlrev_b32 v{t}, 16, v{w+k}")
        E(f"  v_fmac_f32 v{acc+2*k}, v{sc}, v{t}")
        E(f"  v_and_b32 v{t}, 0xffff0000, v{w+k}")
        E(f"  v_fmac_f32 v{acc+2*k+1}, v{sc}, v{t}")

def qproj():
    kstart("qproj_kernel")
    E("  s_cmp_ge_u32 s2, 64")
    E("  s_cbranch_scc1 L_q_end")
    E("  s_load_dwordx2 s[4:5], s[0:1], 0")
    E("  s_load_dwordx2 s[6:7], s[0:1], 24")
    E("  s_load_dwordx2 s[8:9], s[0:1], 96")
    E("  v_and_b32 v1, 63, v0")
    E("  v_lshrrev_b32 v2, 6, v0")
    E("  v_and_b32 v3, 7, v0")
    E("  v_lshrrev_b32 v4, 3, v0")
    E("  v_lshlrev_b32 v5, 13, v4")
    E("  v_lshl_add_u32 v5, v3, 4, v5")
    E("  s_lshl_b32 s3, s2, 7")
    E("  v_add_u32 v5, s3, v5")
    E("  v_lshlrev_b32 v6, 4, v1")
    E("  s_waitcnt lgkmcnt(0)")
    E("  global_load_dwordx4 v[8:11], v6, s[4:5]")
    for i in range(16):
        E(f"  global_load_dwordx4 v[{32+4*i}:{35+4*i}], v5, s[6:7]")
        if i < 15:
            E(f"  v_add_u32 v5, 0x40000, v5")
    E("  s_cmp_lg_u32 s2, 0")
    E("  s_cbranch_scc1 L_q_nz")
    E("  v_mov_b32 v12, 0")
    E("  v_mov_b32 v13, 0")
    E("  v_mov_b32 v14, 0")
    E("  v_mov_b32 v15, 0")
    E("  v_lshlrev_b32 v7, 4, v0")
    E(f"  v_add_u32 v7, {WS_ACCH}, v7")
    E("  global_store_dwordx4 v7, v[12:15], s[8:9]")
    E("L_q_nz:")
    E("  s_waitcnt vmcnt(16)")
    unpack8(8, 16)
    layernorm8(16, 24)
    E("  v_lshlrev_b32 v7, 11, v2")
    E("  v_lshl_add_u32 v28, v1, 5, v7")
    E("  ds_write_b128 v28, v[16:19]")
    E("  ds_write_b128 v28, v[20:23] offset:16")
    E("  v_lshl_add_u32 v28, v4, 2, v7")
    E("  s_waitcnt lgkmcnt(0)")
    for i in range(16):
        E(f"  ds_read_b32 v{96+i}, v28 offset:{i*128}")
    for k in range(8):
        E(f"  v_mov_b32 v{112+k}, 0")
    E("  s_waitcnt lgkmcnt(0)")
    for i in range(16):
        E(f"  s_waitcnt vmcnt({15-i})")
        fma8(112, 32+4*i, 96+i, 24)
    for k in range(8):
        red_stage_dpp("v_add_f32", 112+k, 24, "row_ror:8")
        red_swap("v_add_f32", 112+k, 24, 16)
        red_swap("v_add_f32", 112+k, 24, 32)
    E("  v_lshlrev_b32 v7, 8, v2")
    E("  v_lshl_add_u32 v7, v1, 5, v7")
    E("  v_add_u32 v7, 8192, v7")
    E("  v_cmp_gt_u32 vcc, 8, v1")
    E("  s_and_saveexec_b64 s[10:11], vcc")
    E("  ds_write_b128 v7, v[112:115]")
    E("  ds_write_b128 v7, v[116:119] offset:16")
    E("  s_mov_b64 exec, s[10:11]")
    E("  s_waitcnt lgkmcnt(0)")
    E("  s_barrier")
    E("  v_cmp_gt_u32 vcc, 64, v0")
    E("  s_and_saveexec_b64 s[10:11], vcc")
    E("  s_cbranch_execz L_q_end")
    E("  v_lshlrev_b32 v7, 2, v0")
    E("  ds_read_b32 v8, v7 offset:8192")
    E("  ds_read_b32 v9, v7 offset:8448")
    E("  ds_read_b32 v10, v7 offset:8704")
    E("  ds_read_b32 v11, v7 offset:8960")
    E("  s_waitcnt lgkmcnt(0)")
    E("  v_add_f32 v8, v8, v9")
    E("  v_add_f32 v10, v10, v11")
    E("  v_add_f32 v8, v8, v10")
    E("  v_cvt_pk_bf16_f32 v8, v8, v8")
    E("  v_lshlrev_b32 v7, 1, v0")
    E("  v_add_u32 v7, s3, v7")
    E("  global_store_short v7, v8, s[8:9]")
    E("L_q_end:")
    E("  s_endpgm")
    kdesc("qproj_kernel", 128)

def attn():
    kstart("attn_kernel")
    Q, K0, K1, O, S, P, VF, TA = 4, 20, 52, 84, 116, 124, 128, 144
    KO0, KO1, VO = 152, 153, 154
    M, L, T = 158, 159, 160
    E("  s_cmp_ge_u32 s2, 256")
    E("  s_cbranch_scc1 L_a_end")
    E("  s_load_dwordx2 s[4:5], s[0:1], 8")
    E("  s_load_dwordx2 s[6:7], s[0:1], 16")
    E("  s_load_dwordx2 s[8:9], s[0:1], 96")
    E("  v_and_b32 v1, 63, v0")
    E("  v_lshrrev_b32 v2, 6, v0")
    E("  s_nop 0")
    E("  v_readfirstlane_b32 s12, v2")
    E("  s_lshr_b32 s13, s2, 5")
    E("  s_and_b32 s14, s2, 31")
    E("  v_and_b32 v2, 15, v1")
    E("  v_lshrrev_b32 v3, 4, v1")
    E("  v_and_b32 v160, 3, v2")
    E("  v_lshlrev_b32 v160, 8, v160")
    E("  v_lshl_add_u32 v160, v3, 4, v160")
    E("  s_lshl_b32 s15, s13, 10")
    E("  v_add_u32 v160, s15, v160")
    E(f"  v_lshlrev_b32 v{KO0}, 8, v2")
    E(f"  v_lshl_add_u32 v{KO0}, v3, 4, v{KO0}")
    E(f"  v_add_u32 v{KO1}, 4096, v{KO0}")
    E(f"  v_lshlrev_b32 v161, 1, v3")
    E(f"  v_xor_b32 v162, v2, v161")
    E(f"  v_lshlrev_b32 v162, 4, v162")
    E(f"  v_lshl_add_u32 v{VO}, v3, 8, v162")
    E(f"  v_lshlrev_b32 v162, 4, v2")
    E(f"  v_lshlrev_b32 v163, 5, v3")
    E(f"  v_xor_b32 v162, v162, v163")
    E(f"  v_xor_b32 v162, 128, v162")
    E(f"  v_lshl_add_u32 v{VO+1}, v3, 8, v162")
    E(f"  v_add_u32 v{VO+2}, 4096, v{VO}")
    E(f"  v_add_u32 v{VO+3}, 4096, v{VO+1}")
    E("  v_lshrrev_b32 v161, 2, v2")
    E("  v_lshl_add_u32 v161, v3, 2, v161")
    E("  v_and_b32 v162, 7, v161")
    E("  v_and_b32 v163, 3, v2")
    E("  v_lshlrev_b32 v164, 8, v161")
    E("  v_lshl_add_u32 v164, v163, 3, v164")
    E("  s_lshl_b32 s16, s12, 14")
    E("  v_add_u32 v164, s16, v164")
    for nb in range(8):
        E(f"  v_xor_b32 v165, {nb}, v162")
        E(f"  v_lshl_add_u32 v{TA+nb}, v165, 5, v164")
    E("  s_lshl_b32 s17, s13, 24")
    E("  s_lshl_b32 s18, s14, 19")
    E("  s_add_u32 s17, s17, s18")
    E("  s_lshl_b32 s18, s12, 13")
    E("  s_add_u32 s17, s17, s18")
    E("  s_waitcnt lgkmcnt(0)")
    E("  s_add_u32 s20, s4, s17")
    E("  s_addc_u32 s21, s5, 0")
    E("  s_add_u32 s22, s6, s17")
    E("  s_addc_u32 s23, s7, 0")
    for j in range(4):
        E(f"  global_load_dwordx4 v[{Q+4*j}:{Q+4*j+3}], v160, s[8:9] offset:{j*64}")
    for k in range(32):
        E(f"  v_mov_b32 v{O+k}, 0")
    E(f"  v_mov_b32 v{M}, 0xf149f2ca")
    E(f"  v_mov_b32 v{L}, 0")

    def issue(t):
        kb = K0 if t % 2 == 0 else K1
        for blk in range(2):
            for j in range(4):
                r = kb + blk*16 + j*4
                E(f"  global_load_dwordx4 v[{r}:{r+3}], v{KO0+blk}, s[20:21] offset:{j*64}{NT}")
        for half in range(2):
            E(f"  s_add_u32 s24, s16, {(t%2)*8192 + half*4096}")
            E("  s_mov_b32 m0, s24")
            E("  s_nop 0")
            for ii in range(4):
                i = half*4 + ii
                vo = VO + (i % 2) + 2*half
                off = (ii//2)*2048 + (1024 if i % 2 else 0)
                goff = (ii//2)*2048
                if i % 2 == 0:
                    E(f"  global_load_lds_dwordx4 v{vo}, s[22:23] offset:{off}{NT}")
                else:
                    E(f"  global_load_lds_dwordx4 v{vo}, s[22:23] offset:{off}{NT}")
        E("  s_add_u32 s20, s20, 0x10000")
        E("  s_addc_u32 s21, s21, 0")
        E("  s_add_u32 s22, s22, 0x10000")
        E("  s_addc_u32 s23, s23, 0")

    issue(0)
    for t in range(8):
        if t < 7:
            issue(t+1)
            E("  s_waitcnt vmcnt(16)")
        else:
            E("  s_waitcnt vmcnt(0)")
        kb = K0 if t % 2 == 0 else K1
        for blk in range(2):
            for j in range(4):
                r = kb + blk*16 + j*4
                c = "0" if j == 0 else f"v[{S+4*blk}:{S+4*blk+3}]"
                E(f"  v_mfma_f32_16x16x32_bf16 v[{S+4*blk}:{S+4*blk+3}], v[{r}:{r+3}], v[{Q+4*j}:{Q+4*j+3}], {c}")
        sl = (t % 2)*8192
        def trreads(nb0):
            for q in range(4):
                nb = nb0 + q
                E(f"  ds_read_b64_tr_b16 v[{VF+4*q}:{VF+4*q+1}], v{TA+nb} offset:{sl}")
                E(f"  ds_read_b64_tr_b16 v[{VF+4*q+2}:{VF+4*q+3}], v{TA+nb} offset:{sl+4096}")
        trreads(0)
        E("  s_nop 7")
        for k in range(8):
            bf16r(S+k, T)
            E(f"  v_mul_f32 v{S+k}, {SCALE}, v{S+k}")
            bf16r(S+k, T)
        E(f"  v_max3_f32 v{T}, v{S}, v{S+1}, v{S+2}")
        E(f"  v_max3_f32 v{T}, v{S+3}, v{S+4}, v{T}")
        E(f"  v_max3_f32 v{T}, v{S+5}, v{S+6}, v{T}")
        E(f"  v_max_f32 v{T}, v{S+7}, v{T}")
        red_swap("v_max_f32", T, T+1, 16)
        red_swap("v_max_f32", T, T+1, 32)
        E(f"  v_max_f32 v{T}, v{T}, v{M}")
        E(f"  v_sub_f32 v{T+1}, v{M}, v{T}")
        E(f"  v_mul_f32 v{T+1}, {LOG2E}, v{T+1}")
        E(f"  v_exp_f32 v{T+1}, v{T+1}")
        E(f"  v_mov_b32 v{M}, v{T}")
        for k in range(8):
            E(f"  v_sub_f32 v{S+k}, v{S+k}, v{T}")
            E(f"  v_mul_f32 v{S+k}, {LOG2E}, v{S+k}")
            E(f"  v_exp_f32 v{S+k}, v{S+k}")
        E(f"  v_mul_f32 v{L}, v{L}, v{T+1}")
        for k in range(4):
            E(f"  v_cvt_pk_bf16_f32 v{P+k}, v{S+2*k}, v{S+2*k+1}")
        for k in range(8):
            E(f"  v_add_f32 v{L}, v{L}, v{S+k}")
        for i in range(4):
            E(f"  v_readlane_b32 s{30+i}, v{T+1}, {i}")
        E("  s_nop 1")
        for nb in range(8):
            for i in range(4):
                E(f"  v_mul_f32 v{O+4*nb+i}, s{30+i}, v{O+4*nb+i}")
        E("  s_waitcnt lgkmcnt(0)")
        for q in range(4):
            E(f"  v_mfma_f32_16x16x32_bf16 v[{O+4*q}:{O+4*q+3}], v[{P}:{P+3}], v[{VF+4*q}:{VF+4*q+3}], v[{O+4*q}:{O+4*q+3}]")
        trreads(4)
        E("  s_waitcnt lgkmcnt(0)")
        for q in range(4):
            nb = 4 + q
            E(f"  v_mfma_f32_16x16x32_bf16 v[{O+4*nb}:{O+4*nb+3}], v[{P}:{P+3}], v[{VF+4*q}:{VF+4*q+3}], v[{O+4*nb}:{O+4*nb+3}]")
        E("  s_nop 7")
    red_swap("v_add_f32", L, T, 16)
    red_swap("v_add_f32", L, T, 32)
    E("  s_nop 7")
    E(f"  v_lshl_add_u32 v{T}, v1, 2, s16")
    E(f"  v_lshl_add_u32 v{T+1}, v1, 3, s16")
    E("  v_cmp_gt_u32 vcc, 16, v1")
    E("  s_and_saveexec_b64 s[26:27], vcc")
    for nb in range(8):
        for i in range(4):
            E(f"  ds_write_b32 v{T}, v{O+4*nb+i} offset:{i*512 + nb*64}")
    E("  s_mov_b64 exec, s[26:27]")
    E("  v_cmp_gt_u32 vcc, 4, v1")
    E("  s_and_saveexec_b64 s[26:27], vcc")
    E(f"  ds_write_b64 v{T+1}, v[{M}:{L}] offset:2048")
    E("  s_mov_b64 exec, s[26:27]")
    E("  s_waitcnt lgkmcnt(0)")
    E("  s_barrier")
    E("  v_lshrrev_b32 v2, 7, v0")
    E("  v_lshlrev_b32 v3, 3, v2")
    E("  v_lshlrev_b32 v4, 2, v0")
    E("  v_add_u32 v12, 0x10000, v3")
    E("  v_add_u32 v13, 0x10000, v4")
    for w in range(8):
        E(f"  ds_read_b64 v[{20+2*w}:{21+2*w}], v{3 if w<4 else 12} offset:{(w%4)*16384+2048}")
    for w in range(8):
        E(f"  ds_read_b32 v{40+w}, v{4 if w<4 else 13} offset:{(w%4)*16384}")
    E("  s_waitcnt lgkmcnt(0)")
    E("  v_max3_f32 v5, v20, v22, v24")
    E("  v_max3_f32 v5, v26, v28, v5")
    E("  v_max3_f32 v5, v30, v32, v5")
    E("  v_max_f32 v5, v34, v5")
    E("  v_mov_b32 v6, 0")
    E("  v_mov_b32 v7, 0")
    for w in range(8):
        E(f"  v_sub_f32 v8, v{20+2*w}, v5")
        E(f"  v_mul_f32 v8, {LOG2E}, v8")
        E(f"  v_exp_f32 v8, v8")
        E("  s_nop 0")
        E(f"  v_fmac_f32 v6, v8, v{40+w}")
        E(f"  v_fmac_f32 v7, v8, v{21+2*w}")
    E("  s_lshl_b32 s24, s13, 2")
    E("  v_add_u32 v9, s24, v2")
    E("  v_lshlrev_b32 v9, 5, v9")
    E("  v_add_u32 v9, s14, v9")
    E("  v_and_b32 v10, 127, v0")
    E("  v_lshlrev_b32 v11, 9, v9")
    E("  v_lshl_add_u32 v11, v10, 2, v11")
    E(f"  v_add_u32 v11, {WS_O}, v11")
    E("  global_store_dword v11, v6, s[8:9]")
    E("  v_cmp_eq_u32 vcc, 0, v10")
    E("  s_and_saveexec_b64 s[26:27], vcc")
    E("  v_lshlrev_b32 v11, 3, v9")
    E(f"  v_add_u32 v11, {WS_ML}, v11")
    E("  v_mov_b32 v6, v5")
    E("  global_store_dwordx2 v11, v[6:7], s[8:9]")
    E("L_a_end:")
    E("  s_endpgm")
    kdesc("attn_kernel", 176)

def oproj():
    kstart("oproj_kernel")
    E("  s_cmp_ge_u32 s2, 256")
    E("  s_cbranch_scc1 L_o_end")
    E("  s_load_dwordx2 s[6:7], s[0:1], 32")
    E("  s_load_dwordx2 s[8:9], s[0:1], 96")
    E("  s_lshr_b32 s12, s2, 3")
    E("  s_and_b32 s13, s2, 7")
    E("  v_and_b32 v1, 63, v0")
    E("  v_lshrrev_b32 v2, 6, v0")
    E("  s_nop 0")
    E("  v_readfirstlane_b32 s14, v2")
    E("  v_and_b32 v3, 7, v0")
    E("  v_lshrrev_b32 v4, 3, v0")
    E("  s_lshl_b32 s15, s12, 17")
    E("  s_lshl_b32 s16, s13, 7")
    E("  s_add_u32 s15, s15, s16")
    E("  v_lshlrev_b32 v5, 10, v4")
    E("  v_lshl_add_u32 v5, v3, 4, v5")
    E("  v_add_u32 v5, s15, v5")
    E("  v_and_b32 v6, 31, v1")
    E("  v_lshlrev_b32 v6, 3, v6")
    E("  s_lshl_b32 s17, s12, 8")
    E(f"  s_add_u32 s17, s17, {WS_ML}")
    E("  v_add_u32 v6, s17, v6")
    E("  v_and_b32 v7, 127, v0")
    E("  v_lshrrev_b32 v8, 7, v0")
    E("  v_lshlrev_b32 v9, 13, v8")
    E("  v_lshl_add_u32 v9, v7, 2, v9")
    E("  s_lshl_b32 s18, s12, 14")
    E(f"  s_add_u32 s18, s18, {WS_O}")
    E("  v_add_u32 v9, s18, v9")
    E("  s_waitcnt lgkmcnt(0)")
    E("  global_load_dwordx2 v[10:11], v6, s[8:9]")
    for k in range(8):
        E(f"  global_load_dword v{48+k}, v9, s[8:9] offset:{k*512}")
    E("  v_add_u32 v9, 4096, v9")
    for k in range(8):
        E(f"  global_load_dword v{56+k}, v9, s[8:9] offset:{k*512}")
    for i in range(4):
        E(f"  global_load_dwordx4 v[{32+4*i}:{35+4*i}], v5, s[6:7]")
        if i < 3:
            E("  v_add_u32 v5, 0x8000, v5")
    E("  s_waitcnt vmcnt(20)")
    E("  v_mov_b32 v12, v10")
    wave_reduce("v_max_f32", 12, 13)
    E("  v_sub_f32 v12, v10, v12")
    E(f"  v_mul_f32 v12, {LOG2E}, v12")
    E("  v_exp_f32 v12, v12")
    E("  s_nop 0")
    E("  v_mul_f32 v13, v12, v11")
    E("  v_cmp_gt_u32 vcc, 32, v1")
    E("  s_nop 1")
    E("  v_cndmask_b32 v13, 0, v13, vcc")
    wave_reduce("v_add_f32", 13, 14)
    E("  v_rcp_f32 v13, v13")
    E("  s_nop 0")
    E("  v_mul_f32 v12, v12, v13")
    E("  s_lshr_b32 s19, s14, 1")
    E("  s_lshl_b32 s19, s19, 4")
    E("  v_mov_b32 v14, 0")
    E("  s_waitcnt vmcnt(4)")
    for k in range(16):
        E(f"  s_add_u32 s20, s19, {k}")
        E("  s_nop 3")
        E("  v_readlane_b32 s21, v12, s20")
        E("  s_nop 1")
        E(f"  v_fmac_f32 v14, s21, v{48+k}")
    E("  v_lshlrev_b32 v15, 2, v0")
    E("  ds_write_b32 v15, v14")
    E("  s_waitcnt lgkmcnt(0)")
    E("  s_barrier")
    E("  v_lshlrev_b32 v15, 2, v4")
    for i in range(4):
        E(f"  ds_read_b32 v{16+i}, v15 offset:{i*128}")
        E(f"  ds_read_b32 v{20+i}, v15 offset:{i*128+512}")
    for k in range(8):
        E(f"  v_mov_b32 v{64+k}, 0")
    E("  s_waitcnt lgkmcnt(0)")
    for i in range(4):
        E(f"  v_add_f32 v{16+i}, v{16+i}, v{20+i}")
        bf16r(16+i, 24)
    E("  s_waitcnt vmcnt(0)")
    for i in range(4):
        fma8(64, 32+4*i, 16+i, 24)
    for k in range(8):
        red_stage_dpp("v_add_f32", 64+k, 24, "row_ror:8")
        red_swap("v_add_f32", 64+k, 24, 16)
        red_swap("v_add_f32", 64+k, 24, 32)
    E("  v_lshlrev_b32 v7, 8, v2")
    E("  v_lshl_add_u32 v7, v1, 5, v7")
    E("  v_add_u32 v7, 1024, v7")
    E("  v_cmp_gt_u32 vcc, 8, v1")
    E("  s_and_saveexec_b64 s[10:11], vcc")
    E("  ds_write_b128 v7, v[64:67]")
    E("  ds_write_b128 v7, v[68:71] offset:16")
    E("  s_mov_b64 exec, s[10:11]")
    E("  s_waitcnt lgkmcnt(0)")
    E("  s_barrier")
    E("  v_cmp_gt_u32 vcc, 64, v0")
    E("  s_and_saveexec_b64 s[10:11], vcc")
    E("  s_cbranch_execz L_o_end")
    E("  v_lshlrev_b32 v7, 2, v0")
    E("  ds_read_b32 v8, v7 offset:1024")
    E("  ds_read_b32 v9, v7 offset:1280")
    E("  ds_read_b32 v10, v7 offset:1536")
    E("  ds_read_b32 v11, v7 offset:1792")
    E("  s_waitcnt lgkmcnt(0)")
    E("  v_add_f32 v8, v8, v9")
    E("  v_add_f32 v10, v10, v11")
    E("  v_add_f32 v8, v8, v10")
    E("  s_lshl_b32 s16, s13, 8")
    E(f"  s_add_u32 s16, s16, {WS_ACCH}")
    E("  v_add_u32 v7, s16, v7")
    E("  global_atomic_add_f32 v7, v8, s[8:9]")
    E("L_o_end:")
    E("  s_endpgm")
    kdesc("oproj_kernel", 80)

def mlp():
    NW = 56
    kstart("mlp_kernel")
    E(f"  s_cmp_ge_u32 s2, {NW}")
    E("  s_cbranch_scc1 L_m_end")
    E("  s_load_dwordx2 s[4:5], s[0:1], 0")
    E("  s_load_dwordx2 s[6:7], s[0:1], 48")
    E("  s_load_dwordx2 s[10:11], s[0:1], 56")
    E("  s_load_dwordx2 s[12:13], s[0:1], 64")
    E("  s_load_dwordx2 s[14:15], s[0:1], 72")
    E("  s_load_dwordx2 s[16:17], s[0:1], 80")
    E("  s_load_dwordx2 s[18:19], s[0:1], 88")
    E("  s_load_dwordx2 s[8:9], s[0:1], 96")
    E("  v_and_b32 v1, 63, v0")
    E("  v_lshrrev_b32 v2, 6, v0")
    E("  v_and_b32 v3, 3, v0")
    E("  v_lshrrev_b32 v4, 2, v0")
    E("  s_movk_i32 s20, 3584")
    E("  v_mul_lo_u32 v5, v4, s20")
    E("  v_lshl_add_u32 v5, v3, 4, v5")
    E("  s_lshl_b32 s21, s2, 6")
    E("  v_add_u32 v5, s21, v5")
    E("  v_lshlrev_b32 v6, 13, v2")
    E("  v_lshl_add_u32 v6, v1, 4, v6")
    E("  s_lshl_b32 s22, s2, 15")
    E("  v_add_u32 v6, s22, v6")
    E("  v_lshlrev_b32 v7, 4, v1")
    E("  v_lshlrev_b32 v8, 5, v1")
    E(f"  v_add_u32 v8, {WS_ACCH}, v8")
    E("  v_and_b32 v9, 31, v0")
    E("  v_lshlrev_b32 v9, 1, v9")
    E("  v_add_u32 v9, s21, v9")
    E("  s_waitcnt lgkmcnt(0)")
    E("  global_load_ushort v10, v9, s[10:11]")
    E("  global_load_dwordx4 v[12:15], v7, s[4:5]")
    E("  global_load_dwordx4 v[16:19], v8, s[8:9]")
    E("  global_load_dwordx4 v[20:23], v8, s[8:9] offset:16")
    for i in range(8):
        E(f"  global_load_dwordx4 v[{40+4*i}:{43+4*i}], v5, s[6:7]")
        if i < 7:
            E(f"  v_add_u32 v5, {64*3584}, v5")
    for i in range(8):
        E(f"  global_load_dwordx4 v[{72+4*i}:{75+4*i}], v6, s[12:13] offset:{0}")
        if i < 7:
            E(f"  v_add_u32 v6, 1024, v6")
    E("  s_waitcnt vmcnt(16)")
    unpack8(12, 24)
    for k in range(8):
        bf16r(16+k, 32)
        E(f"  v_add_f32 v{16+k}, v{16+k}, v{24+k}")
        bf16r(16+k, 32)
        E(f"  v_mov_b32 v{24+k}, v{16+k}")
    layernorm8(16, 32)
    E("  v_lshlrev_b32 v36, 11, v2")
    E("  v_lshl_add_u32 v37, v1, 5, v36")
    E("  ds_write_b128 v37, v[16:19]")
    E("  ds_write_b128 v37, v[20:23] offset:16")
    E("  v_lshl_add_u32 v37, v4, 2, v36")
    E("  s_waitcnt lgkmcnt(0)")
    for i in range(8):
        E(f"  ds_read_b32 v{104+i}, v37 offset:{i*256}")
    for k in range(8):
        E(f"  v_mov_b32 v{112+k}, 0")
    E("  s_waitcnt lgkmcnt(0)")
    for i in range(8):
        E(f"  s_waitcnt vmcnt({15-i})")
        fma8(112, 40+4*i, 104+i, 32)
    for k in range(8):
        red_stage_dpp("v_add_f32", 112+k, 32, "row_ror:4")
        red_stage_dpp("v_add_f32", 112+k, 32, "row_ror:8")
        red_swap("v_add_f32", 112+k, 32, 16)
        red_swap("v_add_f32", 112+k, 32, 32)
    E("  v_lshlrev_b32 v36, 7, v2")
    E("  v_lshl_add_u32 v36, v1, 5, v36")
    E("  v_add_u32 v36, 8192, v36")
    E("  v_cmp_gt_u32 vcc, 4, v1")
    E("  s_and_saveexec_b64 s[24:25], vcc")
    E("  ds_write_b128 v36, v[112:115]")
    E("  ds_write_b128 v36, v[116:119] offset:16")
    E("  s_mov_b64 exec, s[24:25]")
    E("  s_waitcnt lgkmcnt(0)")
    E("  s_barrier")
    E("  v_cmp_gt_u32 vcc, 32, v0")
    E("  s_and_saveexec_b64 s[24:25], vcc")
    E("  v_lshlrev_b32 v36, 2, v0")
    E("  ds_read_b32 v32, v36 offset:8192")
    E("  ds_read_b32 v33, v36 offset:8320")
    E("  ds_read_b32 v34, v36 offset:8448")
    E("  ds_read_b32 v35, v36 offset:8576")
    E("  s_waitcnt vmcnt(0) lgkmcnt(0)")
    E("  v_add_f32 v32, v32, v33")
    E("  v_add_f32 v34, v34, v35")
    E("  v_add_f32 v32, v32, v34")
    bf16r(32, 33)
    E("  v_lshlrev_b32 v10, 16, v10")
    E("  v_add_f32 v32, v32, v10")
    bf16r(32, 33)
    E("  v_max_f32 v32, 0, v32")
    E("  v_mul_f32 v32, v32, v32")
    bf16r(32, 33)
    E("  ds_write_b32 v36, v32 offset:8704")
    E("  s_mov_b64 exec, s[24:25]")
    E("  s_waitcnt lgkmcnt(0)")
    E("  s_barrier")
    E("  v_lshlrev_b32 v36, 5, v2")
    for i in range(8):
        E(f"  ds_read_b32 v{104+i}, v36 offset:{8704+i*4}")
    for k in range(8):
        E(f"  v_mov_b32 v{112+k}, 0")
    E("  s_waitcnt vmcnt(0) lgkmcnt(0)")
    for i in range(8):
        fma8(112, 72+4*i, 104+i, 32)
    E("  v_lshlrev_b32 v36, 11, v2")
    E("  v_lshl_add_u32 v36, v1, 5, v36")
    E("  ds_write_b128 v36, v[112:115] offset:12288")
    E("  ds_write_b128 v36, v[116:119] offset:12304")
    E("  s_waitcnt lgkmcnt(0)")
    E("  s_barrier")
    E("  v_lshlrev_b32 v36, 3, v0")
    E("  ds_read_b64 v[32:33], v36 offset:12288")
    E("  ds_read_b64 v[34:35], v36 offset:14336")
    E("  ds_read_b64 v[112:113], v36 offset:16384")
    E("  ds_read_b64 v[114:115], v36 offset:18432")
    E("  s_waitcnt lgkmcnt(0)")
    E("  v_add_f32 v32, v32, v34")
    E("  v_add_f32 v33, v33, v35")
    E("  v_add_f32 v112, v112, v114")
    E("  v_add_f32 v113, v113, v115")
    E("  v_add_f32 v32, v32, v112")
    E("  v_add_f32 v33, v33, v113")
    E(f"  v_add_u32 v37, {WS_ACCO}, v36")
    E("  global_atomic_add_f32 v37, v32, s[8:9]")
    E("  global_atomic_add_f32 v37, v33, s[8:9] offset:4")
    E("  s_waitcnt vmcnt(0)")
    E("  s_barrier")
    E("  v_mov_b32 v38, 0")
    E("  v_mov_b32 v39, 1")
    E("  v_cmp_eq_u32 vcc, 0, v0")
    E("  s_and_saveexec_b64 s[24:25], vcc")
    E("  global_atomic_add v38, v38, v39, s[18:19] sc0")
    E("  s_waitcnt vmcnt(0)")
    E("  v_mov_b32 v39, 0")
    E("  ds_write_b32 v39, v38 offset:9000")
    E("  s_mov_b64 exec, s[24:25]")
    E("  s_waitcnt lgkmcnt(0)")
    E("  s_barrier")
    E("  v_mov_b32 v39, 0")
    E("  ds_read_b32 v38, v39 offset:9000")
    E("  s_waitcnt lgkmcnt(0)")
    E("  v_readfirstlane_b32 s26, v38")
    E(f"  s_cmp_lg_u32 s26, {NW-1}")
    E("  s_cbranch_scc1 L_m_end")
    E("  v_readfirstlane_b32 s27, v2")
    E("  s_cmp_lg_u32 s27, 0")
    E("  s_cbranch_scc1 L_m_end")
    E("  v_lshlrev_b32 v36, 5, v1")
    E(f"  v_add_u32 v36, {WS_ACCO}, v36")
    E("  v_mov_b32 v39, 0")
    for k in range(8):
        E(f"  global_atomic_add_f32 v{112+k}, v36, v39, s[8:9] offset:{4*k} sc0")
    E("  global_load_dwordx4 v[12:15], v7, s[14:15]")
    E("  s_waitcnt vmcnt(0)")
    unpack8(12, 40)
    for k in range(8):
        bf16r(112+k, 32)
        E(f"  v_add_f32 v{112+k}, v{112+k}, v{40+k}")
        bf16r(112+k, 32)
        E(f"  v_add_f32 v{112+k}, v{112+k}, v{24+k}")
    for k in range(4):
        E(f"  v_cvt_pk_bf16_f32 v{12+k}, v{112+2*k}, v{113+2*k}")
    E("  global_store_dwordx4 v7, v[12:15], s[16:17]")
    E("L_m_end:")
    E("  s_endpgm")
    kdesc("mlp_kernel", 128)

header()
qproj()
attn()
oproj()
mlp()
open(sys.argv[1] if len(sys.argv) > 1 else f"cdna_kernels/{NAME}.s", "w").write("\n".join(out) + "\n")
```

```python
import sys, os
KF = os.environ.get("KF","")
VFL = os.environ.get("VFL","")
KF = (" "+KF) if KF else ""
VFL = (" "+VFL) if VFL else ""

NAME = "sequential_preLN__gqa_block_cached__dense_activation_squared_relu__decode"
out = []
def E(s=""):
    out.append(s)

WS_Q = 0
WS_ACCH = 8192
WS_ACCO = 8192 + 2048
WS_ML = 16384
WS_O = 65536

LOG2E = "0x3fb8aa3b"
SCALE = "0x3db504f3"

def header():
    E("; generated by gen_v1.py")
    E("; @launch kernel=qproj_kernel grid=(64,1,1) block=(256,1,1) lds=12288")
    E("; @launch kernel=attn_kernel grid=(256,1,1) block=(512,1,1) lds=131072")
    E("; @launch kernel=oproj_kernel grid=(256,1,1) block=(256,1,1) lds=4096")
    E("; @launch kernel=mlp_kernel grid=(56,1,1) block=(256,1,1) lds=20480")
    E('.amdgcn_target "amdgcn-amd-amdhsa--gfx950"')
    E(".text")

def kstart(name):
    E(f".globl {name}")
    E(".p2align 8")
    E(f".type {name},@function")
    E(f"{name}:")

def kdesc(name, vgpr):
    acc = (vgpr + 3)//4*4
    E('.section .rodata,"a"')
    E(".p2align 6")
    E(f".amdhsa_kernel {name}")
    E(f"  .amdhsa_next_free_vgpr {vgpr}")
    E("  .amdhsa_next_free_sgpr 96")
    E(f"  .amdhsa_accum_offset {acc}")
    E("  .amdhsa_group_segment_fixed_size 0")
    E("  .amdhsa_kernarg_size 104")
    E("  .amdhsa_user_sgpr_count 2")
    E("  .amdhsa_user_sgpr_kernarg_segment_ptr 1")
    E("  .amdhsa_system_sgpr_workgroup_id_x 1")
    E(".end_amdhsa_kernel")
    E(".text")

def bf16r(v, t):
    E(f"  v_cvt_pk_bf16_f32 v{t}, v{v}, v{v}")
    E(f"  v_lshlrev_b32 v{v}, 16, v{t}")

def red_stage_dpp(op, v, t, ctrl):
    E("  s_nop 1")
    E(f"  v_mov_b32_dpp v{t}, v{v} {ctrl} row_mask:0xf bank_mask:0xf")
    E(f"  {op} v{v}, v{v}, v{t}")

def red_swap(op, v, t, which):
    E(f"  v_mov_b32 v{t}, v{v}")
    E("  s_nop 1")
    E(f"  v_permlane{which}_swap_b32 v{v}, v{t}")
    E(f"  {op} v{v}, v{v}, v{t}")

def wave_reduce(op, v, t):
    red_stage_dpp(op, v, t, "quad_perm:[1,0,3,2]")
    red_stage_dpp(op, v, t, "quad_perm:[2,3,0,1]")
    red_stage_dpp(op, v, t, "row_half_mirror")
    red_stage_dpp(op, v, t, "row_mirror")
    red_swap(op, v, t, 16)
    red_swap(op, v, t, 32)

def layernorm8(x, t):
    s, t1, t2, t3 = t, t+1, t+2, t+3
    E(f"  v_add_f32 v{s}, v{x}, v{x+1}")
    for i in range(2, 8):
        E(f"  v_add_f32 v{s}, v{s}, v{x+i}")
    wave_reduce("v_add_f32", s, t1)
    E(f"  v_mul_f32 v{s}, 0x3b000000, v{s}")
    E(f"  v_sub_f32 v{t1}, v{x}, v{s}")
    E(f"  v_mul_f32 v{t2}, v{t1}, v{t1}")
    for i in range(1, 8):
        E(f"  v_sub_f32 v{t1}, v{x+i}, v{s}")
        E(f"  v_fmac_f32 v{t2}, v{t1}, v{t1}")
    wave_reduce("v_add_f32", t2, t1)
    E(f"  v_mul_f32 v{t2}, 0x3b000000, v{t2}")
    bf16r(t2, t1)
    E(f"  v_add_f32 v{t2}, 0x3727c5ac, v{t2}")
    bf16r(t2, t1)
    E(f"  v_sqrt_f32 v{t2}, v{t2}")
    E("  s_nop 0")
    bf16r(t2, t1)
    E(f"  v_rcp_f32 v{t2}, v{t2}")
    bf16r(s, t1)
    for i in range(8):
        E(f"  v_sub_f32 v{x+i}, v{x+i}, v{s}")
        bf16r(x+i, t1)
        E(f"  v_mul_f32 v{x+i}, v{x+i}, v{t2}")
        bf16r(x+i, t1)

def unpack8(src, dst):
    for k in range(4):
        E(f"  v_lshlrev_b32 v{dst+2*k}, 16, v{src+k}")
        E(f"  v_and_b32 v{dst+2*k+1}, 0xffff0000, v{src+k}")

def fma8(acc, w, sc, t):
    for k in range(4):
        E(f"  v_lshlrev_b32 v{t}, 16, v{w+k}")
        E(f"  v_fmac_f32 v{acc+2*k}, v{sc}, v{t}")
        E(f"  v_and_b32 v{t}, 0xffff0000, v{w+k}")
        E(f"  v_fmac_f32 v{acc+2*k+1}, v{sc}, v{t}")

def qproj():
    kstart("qproj_kernel")
    E("  s_cmp_ge_u32 s2, 64")
    E("  s_cbranch_scc1 L_q_end")
    E("  s_load_dwordx2 s[4:5], s[0:1], 0")
    E("  s_load_dwordx2 s[6:7], s[0:1], 24")
    E("  s_load_dwordx2 s[8:9], s[0:1], 96")
    E("  v_and_b32 v1, 63, v0")
    E("  v_lshrrev_b32 v2, 6, v0")
    E("  v_and_b32 v3, 7, v0")
    E("  v_lshrrev_b32 v4, 3, v0")
    E("  v_lshlrev_b32 v5, 13, v4")
    E("  v_lshl_add_u32 v5, v3, 4, v5")
    E("  s_lshl_b32 s3, s2, 7")
    E("  v_add_u32 v5, s3, v5")
    E("  v_lshlrev_b32 v6, 4, v1")
    E("  s_waitcnt lgkmcnt(0)")
    E("  global_load_dwordx4 v[8:11], v6, s[4:5]")
    for i in range(16):
        E(f"  global_load_dwordx4 v[{32+4*i}:{35+4*i}], v5, s[6:7]")
        if i < 15:
            E(f"  v_add_u32 v5, 0x40000, v5")
    E("  s_cmp_lg_u32 s2, 0")
    E("  s_cbranch_scc1 L_q_nz")
    E("  v_mov_b32 v12, 0")
    E("  v_mov_b32 v13, 0")
    E("  v_mov_b32 v14, 0")
    E("  v_mov_b32 v15, 0")
    E("  v_lshlrev_b32 v7, 4, v0")
    E(f"  v_add_u32 v7, {WS_ACCH}, v7")
    E("  global_store_dwordx4 v7, v[12:15], s[8:9]")
    E("L_q_nz:")
    E("  s_waitcnt vmcnt(16)")
    unpack8(8, 16)
    layernorm8(16, 24)
    E("  v_lshlrev_b32 v7, 11, v2")
    E("  v_lshl_add_u32 v28, v1, 5, v7")
    E("  ds_write_b128 v28, v[16:19]")
    E("  ds_write_b128 v28, v[20:23] offset:16")
    E("  v_lshl_add_u32 v28, v4, 2, v7")
    E("  s_waitcnt lgkmcnt(0)")
    for i in range(16):
        E(f"  ds_read_b32 v{96+i}, v28 offset:{i*128}")
    for k in range(8):
        E(f"  v_mov_b32 v{112+k}, 0")
    E("  s_waitcnt lgkmcnt(0)")
    for i in range(16):
        E(f"  s_waitcnt vmcnt({15-i})")
        fma8(112, 32+4*i, 96+i, 24)
    for k in range(8):
        red_stage_dpp("v_add_f32", 112+k, 24, "row_ror:8")
        red_swap("v_add_f32", 112+k, 24, 16)
        red_swap("v_add_f32", 112+k, 24, 32)
    E("  v_lshlrev_b32 v7, 8, v2")
    E("  v_lshl_add_u32 v7, v1, 5, v7")
    E("  v_add_u32 v7, 8192, v7")
    E("  v_cmp_gt_u32 vcc, 8, v1")
    E("  s_and_saveexec_b64 s[10:11], vcc")
    E("  ds_write_b128 v7, v[112:115]")
    E("  ds_write_b128 v7, v[116:119] offset:16")
    E("  s_mov_b64 exec, s[10:11]")
    E("  s_waitcnt lgkmcnt(0)")
    E("  s_barrier")
    E("  v_cmp_gt_u32 vcc, 64, v0")
    E("  s_and_saveexec_b64 s[10:11], vcc")
    E("  s_cbranch_execz L_q_end")
    E("  v_lshlrev_b32 v7, 2, v0")
    E("  ds_read_b32 v8, v7 offset:8192")
    E("  ds_read_b32 v9, v7 offset:8448")
    E("  ds_read_b32 v10, v7 offset:8704")
    E("  ds_read_b32 v11, v7 offset:8960")
    E("  s_waitcnt lgkmcnt(0)")
    E("  v_add_f32 v8, v8, v9")
    E("  v_add_f32 v10, v10, v11")
    E("  v_add_f32 v8, v8, v10")
    E("  v_cvt_pk_bf16_f32 v8, v8, v8")
    E("  v_lshlrev_b32 v7, 1, v0")
    E("  v_add_u32 v7, s3, v7")
    E("  global_store_short v7, v8, s[8:9]")
    E("L_q_end:")
    E("  s_endpgm")
    kdesc("qproj_kernel", 128)

def attn():
    kstart("attn_kernel")
    Q, K0, K1, O, S, P, VF, TA = 4, 20, 52, 84, 116, 124, 128, 144
    KO0, KO1, VO = 152, 153, 154
    M, L, T = 158, 159, 160
    E("  s_cmp_ge_u32 s2, 256")
    E("  s_cbranch_scc1 L_a_end")
    E("  s_load_dwordx2 s[4:5], s[0:1], 8")
    E("  s_load_dwordx2 s[6:7], s[0:1], 16")
    E("  s_load_dwordx2 s[8:9], s[0:1], 96")
    E("  v_and_b32 v1, 63, v0")
    E("  v_lshrrev_b32 v2, 6, v0")
    E("  s_nop 0")
    E("  v_readfirstlane_b32 s12, v2")
    E("  s_lshr_b32 s13, s2, 5")
    E("  s_and_b32 s14, s2, 31")
    E("  v_and_b32 v2, 15, v1")
    E("  v_lshrrev_b32 v3, 4, v1")
    E("  v_and_b32 v160, 3, v2")
    E("  v_lshlrev_b32 v160, 8, v160")
    E("  v_lshl_add_u32 v160, v3, 4, v160")
    E("  s_lshl_b32 s15, s13, 10")
    E("  v_add_u32 v160, s15, v160")
    E(f"  v_lshlrev_b32 v{KO0}, 8, v2")
    E(f"  v_lshl_add_u32 v{KO0}, v3, 4, v{KO0}")
    E(f"  v_add_u32 v{KO1}, 4096, v{KO0}")
    E(f"  v_lshlrev_b32 v161, 1, v3")
    E(f"  v_xor_b32 v162, v2, v161")
    E(f"  v_lshlrev_b32 v162, 4, v162")
    E(f"  v_lshl_add_u32 v{VO}, v3, 8, v162")
    E(f"  v_lshlrev_b32 v162, 4, v2")
    E(f"  v_lshlrev_b32 v163, 5, v3")
    E(f"  v_xor_b32 v162, v162, v163")
    E(f"  v_xor_b32 v162, 128, v162")
    E(f"  v_lshl_add_u32 v{VO+1}, v3, 8, v162")
    E(f"  v_add_u32 v{VO+2}, 4096, v{VO}")
    E(f"  v_add_u32 v{VO+3}, 4096, v{VO+1}")
    E("  v_lshrrev_b32 v161, 2, v2")
    E("  v_lshl_add_u32 v161, v3, 2, v161")
    E("  v_and_b32 v162, 7, v161")
    E("  v_and_b32 v163, 3, v2")
    E("  v_lshlrev_b32 v164, 8, v161")
    E("  v_lshl_add_u32 v164, v163, 3, v164")
    E("  s_lshl_b32 s16, s12, 14")
    E("  v_add_u32 v164, s16, v164")
    for nb in range(8):
        E(f"  v_xor_b32 v165, {nb}, v162")
        E(f"  v_lshl_add_u32 v{TA+nb}, v165, 5, v164")
    E("  s_lshl_b32 s17, s13, 24")
    E("  s_lshl_b32 s18, s14, 19")
    E("  s_add_u32 s17, s17, s18")
    E("  s_lshl_b32 s18, s12, 13")
    E("  s_add_u32 s17, s17, s18")
    E("  s_waitcnt lgkmcnt(0)")
    E("  s_add_u32 s20, s4, s17")
    E("  s_addc_u32 s21, s5, 0")
    E("  s_add_u32 s22, s6, s17")
    E("  s_addc_u32 s23, s7, 0")
    for j in range(4):
        E(f"  global_load_dwordx4 v[{Q+4*j}:{Q+4*j+3}], v160, s[8:9] offset:{j*64}")
    for k in range(32):
        E(f"  v_mov_b32 v{O+k}, 0")
    E(f"  v_mov_b32 v{M}, 0xf149f2ca")
    E(f"  v_mov_b32 v{L}, 0")

    def issue(t):
        kb = K0 if t % 2 == 0 else K1
        for blk in range(2):
            for j in range(4):
                r = kb + blk*16 + j*4
                E(f"  global_load_dwordx4 v[{r}:{r+3}], v{KO0+blk}, s[20:21] offset:{j*64}{KF}")
        for half in range(2):
            E(f"  s_add_u32 s24, s16, {(t%2)*8192 + half*4096}")
            E("  s_mov_b32 m0, s24")
            E("  s_nop 0")
            for ii in range(4):
                i = half*4 + ii
                vo = VO + (i % 2) + 2*half
                off = (ii//2)*2048 + (1024 if i % 2 else 0)
                goff = (ii//2)*2048
                if i % 2 == 0:
                    E(f"  global_load_lds_dwordx4 v{vo}, s[22:23] offset:{off}{VFL}")
                else:
                    E(f"  global_load_lds_dwordx4 v{vo}, s[22:23] offset:{off}{VFL}")
        E("  s_add_u32 s20, s20, 0x10000")
        E("  s_addc_u32 s21, s21, 0")
        E("  s_add_u32 s22, s22, 0x10000")
        E("  s_addc_u32 s23, s23, 0")

    issue(0)
    for t in range(8):
        if t < 7:
            issue(t+1)
            E("  s_waitcnt vmcnt(16)")
        else:
            E("  s_waitcnt vmcnt(0)")
        kb = K0 if t % 2 == 0 else K1
        for blk in range(2):
            for j in range(4):
                r = kb + blk*16 + j*4
                c = "0" if j == 0 else f"v[{S+4*blk}:{S+4*blk+3}]"
                E(f"  v_mfma_f32_16x16x32_bf16 v[{S+4*blk}:{S+4*blk+3}], v[{r}:{r+3}], v[{Q+4*j}:{Q+4*j+3}], {c}")
        sl = (t % 2)*8192
        def trreads(nb0):
            for q in range(4):
                nb = nb0 + q
                E(f"  ds_read_b64_tr_b16 v[{VF+4*q}:{VF+4*q+1}], v{TA+nb} offset:{sl}")
                E(f"  ds_read_b64_tr_b16 v[{VF+4*q+2}:{VF+4*q+3}], v{TA+nb} offset:{sl+4096}")
        trreads(0)
        E("  s_nop 7")
        for k in range(8):
            bf16r(S+k, T)
            E(f"  v_mul_f32 v{S+k}, {SCALE}, v{S+k}")
            bf16r(S+k, T)
        E(f"  v_max3_f32 v{T}, v{S}, v{S+1}, v{S+2}")
        E(f"  v_max3_f32 v{T}, v{S+3}, v{S+4}, v{T}")
        E(f"  v_max3_f32 v{T}, v{S+5}, v{S+6}, v{T}")
        E(f"  v_max_f32 v{T}, v{S+7}, v{T}")
        red_swap("v_max_f32", T, T+1, 16)
        red_swap("v_max_f32", T, T+1, 32)
        E(f"  v_max_f32 v{T}, v{T}, v{M}")
        E(f"  v_sub_f32 v{T+1}, v{M}, v{T}")
        E(f"  v_mul_f32 v{T+1}, {LOG2E}, v{T+1}")
        E(f"  v_exp_f32 v{T+1}, v{T+1}")
        E(f"  v_mov_b32 v{M}, v{T}")
        for k in range(8):
            E(f"  v_sub_f32 v{S+k}, v{S+k}, v{T}")
            E(f"  v_mul_f32 v{S+k}, {LOG2E}, v{S+k}")
            E(f"  v_exp_f32 v{S+k}, v{S+k}")
        E(f"  v_mul_f32 v{L}, v{L}, v{T+1}")
        for k in range(4):
            E(f"  v_cvt_pk_bf16_f32 v{P+k}, v{S+2*k}, v{S+2*k+1}")
        for k in range(8):
            E(f"  v_add_f32 v{L}, v{L}, v{S+k}")
        for i in range(4):
            E(f"  v_readlane_b32 s{30+i}, v{T+1}, {i}")
        E("  s_nop 1")
        for nb in range(8):
            for i in range(4):
                E(f"  v_mul_f32 v{O+4*nb+i}, s{30+i}, v{O+4*nb+i}")
        E("  s_waitcnt lgkmcnt(0)")
        for q in range(4):
            E(f"  v_mfma_f32_16x16x32_bf16 v[{O+4*q}:{O+4*q+3}], v[{P}:{P+3}], v[{VF+4*q}:{VF+4*q+3}], v[{O+4*q}:{O+4*q+3}]")
        trreads(4)
        E("  s_waitcnt lgkmcnt(0)")
        for q in range(4):
            nb = 4 + q
            E(f"  v_mfma_f32_16x16x32_bf16 v[{O+4*nb}:{O+4*nb+3}], v[{P}:{P+3}], v[{VF+4*q}:{VF+4*q+3}], v[{O+4*nb}:{O+4*nb+3}]")
        E("  s_nop 7")
    red_swap("v_add_f32", L, T, 16)
    red_swap("v_add_f32", L, T, 32)
    E("  s_nop 7")
    E(f"  v_lshl_add_u32 v{T}, v1, 2, s16")
    E(f"  v_lshl_add_u32 v{T+1}, v1, 3, s16")
    E("  v_cmp_gt_u32 vcc, 16, v1")
    E("  s_and_saveexec_b64 s[26:27], vcc")
    for nb in range(8):
        for i in range(4):
            E(f"  ds_write_b32 v{T}, v{O+4*nb+i} offset:{i*512 + nb*64}")
    E("  s_mov_b64 exec, s[26:27]")
    E("  v_cmp_gt_u32 vcc, 4, v1")
    E("  s_and_saveexec_b64 s[26:27], vcc")
    E(f"  ds_write_b64 v{T+1}, v[{M}:{L}] offset:2048")
    E("  s_mov_b64 exec, s[26:27]")
    E("  s_waitcnt lgkmcnt(0)")
    E("  s_barrier")
    E("  v_lshrrev_b32 v2, 7, v0")
    E("  v_lshlrev_b32 v3, 3, v2")
    E("  v_lshlrev_b32 v4, 2, v0")
    E("  v_add_u32 v12, 0x10000, v3")
    E("  v_add_u32 v13, 0x10000, v4")
    for w in range(8):
        E(f"  ds_read_b64 v[{20+2*w}:{21+2*w}], v{3 if w<4 else 12} offset:{(w%4)*16384+2048}")
    for w in range(8):
        E(f"  ds_read_b32 v{40+w}, v{4 if w<4 else 13} offset:{(w%4)*16384}")
    E("  s_waitcnt lgkmcnt(0)")
    E("  v_max3_f32 v5, v20, v22, v24")
    E("  v_max3_f32 v5, v26, v28, v5")
    E("  v_max3_f32 v5, v30, v32, v5")
    E("  v_max_f32 v5, v34, v5")
    E("  v_mov_b32 v6, 0")
    E("  v_mov_b32 v7, 0")
    for w in range(8):
        E(f"  v_sub_f32 v8, v{20+2*w}, v5")
        E(f"  v_mul_f32 v8, {LOG2E}, v8")
        E(f"  v_exp_f32 v8, v8")
        E("  s_nop 0")
        E(f"  v_fmac_f32 v6, v8, v{40+w}")
        E(f"  v_fmac_f32 v7, v8, v{21+2*w}")
    E("  s_lshl_b32 s24, s13, 2")
    E("  v_add_u32 v9, s24, v2")
    E("  v_lshlrev_b32 v9, 5, v9")
    E("  v_add_u32 v9, s14, v9")
    E("  v_and_b32 v10, 127, v0")
    E("  v_lshlrev_b32 v11, 9, v9")
    E("  v_lshl_add_u32 v11, v10, 2, v11")
    E(f"  v_add_u32 v11, {WS_O}, v11")
    E("  global_store_dword v11, v6, s[8:9]")
    E("  v_cmp_eq_u32 vcc, 0, v10")
    E("  s_and_saveexec_b64 s[26:27], vcc")
    E("  v_lshlrev_b32 v11, 3, v9")
    E(f"  v_add_u32 v11, {WS_ML}, v11")
    E("  v_mov_b32 v6, v5")
    E("  global_store_dwordx2 v11, v[6:7], s[8:9]")
    E("L_a_end:")
    E("  s_endpgm")
    kdesc("attn_kernel", 176)

def oproj():
    kstart("oproj_kernel")
    E("  s_cmp_ge_u32 s2, 256")
    E("  s_cbranch_scc1 L_o_end")
    E("  s_load_dwordx2 s[6:7], s[0:1], 32")
    E("  s_load_dwordx2 s[8:9], s[0:1], 96")
    E("  s_lshr_b32 s12, s2, 3")
    E("  s_and_b32 s13, s2, 7")
    E("  v_and_b32 v1, 63, v0")
    E("  v_lshrrev_b32 v2, 6, v0")
    E("  s_nop 0")
    E("  v_readfirstlane_b32 s14, v2")
    E("  v_and_b32 v3, 7, v0")
    E("  v_lshrrev_b32 v4, 3, v0")
    E("  s_lshl_b32 s15, s12, 17")
    E("  s_lshl_b32 s16, s13, 7")
    E("  s_add_u32 s15, s15, s16")
    E("  v_lshlrev_b32 v5, 10, v4")
    E("  v_lshl_add_u32 v5, v3, 4, v5")
    E("  v_add_u32 v5, s15, v5")
    E("  v_and_b32 v6, 31, v1")
    E("  v_lshlrev_b32 v6, 3, v6")
    E("  s_lshl_b32 s17, s12, 8")
    E(f"  s_add_u32 s17, s17, {WS_ML}")
    E("  v_add_u32 v6, s17, v6")
    E("  v_and_b32 v7, 127, v0")
    E("  v_lshrrev_b32 v8, 7, v0")
    E("  v_lshlrev_b32 v9, 13, v8")
    E("  v_lshl_add_u32 v9, v7, 2, v9")
    E("  s_lshl_b32 s18, s12, 14")
    E(f"  s_add_u32 s18, s18, {WS_O}")
    E("  v_add_u32 v9, s18, v9")
    E("  s_waitcnt lgkmcnt(0)")
    E("  global_load_dwordx2 v[10:11], v6, s[8:9]")
    for k in range(8):
        E(f"  global_load_dword v{48+k}, v9, s[8:9] offset:{k*512}")
    E("  v_add_u32 v9, 4096, v9")
    for k in range(8):
        E(f"  global_load_dword v{56+k}, v9, s[8:9] offset:{k*512}")
    for i in range(4):
        E(f"  global_load_dwordx4 v[{32+4*i}:{35+4*i}], v5, s[6:7]")
        if i < 3:
            E("  v_add_u32 v5, 0x8000, v5")
    E("  s_waitcnt vmcnt(20)")
    E("  v_mov_b32 v12, v10")
    wave_reduce("v_max_f32", 12, 13)
    E("  v_sub_f32 v12, v10, v12")
    E(f"  v_mul_f32 v12, {LOG2E}, v12")
    E("  v_exp_f32 v12, v12")
    E("  s_nop 0")
    E("  v_mul_f32 v13, v12, v11")
    E("  v_cmp_gt_u32 vcc, 32, v1")
    E("  s_nop 1")
    E("  v_cndmask_b32 v13, 0, v13, vcc")
    wave_reduce("v_add_f32", 13, 14)
    E("  v_rcp_f32 v13, v13")
    E("  s_nop 0")
    E("  v_mul_f32 v12, v12, v13")
    E("  s_lshr_b32 s19, s14, 1")
    E("  s_lshl_b32 s19, s19, 4")
    E("  v_mov_b32 v14, 0")
    E("  s_waitcnt vmcnt(4)")
    for k in range(16):
        E(f"  s_add_u32 s20, s19, {k}")
        E("  s_nop 3")
        E("  v_readlane_b32 s21, v12, s20")
        E("  s_nop 1")
        E(f"  v_fmac_f32 v14, s21, v{48+k}")
    E("  v_lshlrev_b32 v15, 2, v0")
    E("  ds_write_b32 v15, v14")
    E("  s_waitcnt lgkmcnt(0)")
    E("  s_barrier")
    E("  v_lshlrev_b32 v15, 2, v4")
    for i in range(4):
        E(f"  ds_read_b32 v{16+i}, v15 offset:{i*128}")
        E(f"  ds_read_b32 v{20+i}, v15 offset:{i*128+512}")
    for k in range(8):
        E(f"  v_mov_b32 v{64+k}, 0")
    E("  s_waitcnt lgkmcnt(0)")
    for i in range(4):
        E(f"  v_add_f32 v{16+i}, v{16+i}, v{20+i}")
        bf16r(16+i, 24)
    E("  s_waitcnt vmcnt(0)")
    for i in range(4):
        fma8(64, 32+4*i, 16+i, 24)
    for k in range(8):
        red_stage_dpp("v_add_f32", 64+k, 24, "row_ror:8")
        red_swap("v_add_f32", 64+k, 24, 16)
        red_swap("v_add_f32", 64+k, 24, 32)
    E("  v_lshlrev_b32 v7, 8, v2")
    E("  v_lshl_add_u32 v7, v1, 5, v7")
    E("  v_add_u32 v7, 1024, v7")
    E("  v_cmp_gt_u32 vcc, 8, v1")
    E("  s_and_saveexec_b64 s[10:11], vcc")
    E("  ds_write_b128 v7, v[64:67]")
    E("  ds_write_b128 v7, v[68:71] offset:16")
    E("  s_mov_b64 exec, s[10:11]")
    E("  s_waitcnt lgkmcnt(0)")
    E("  s_barrier")
    E("  v_cmp_gt_u32 vcc, 64, v0")
    E("  s_and_saveexec_b64 s[10:11], vcc")
    E("  s_cbranch_execz L_o_end")
    E("  v_lshlrev_b32 v7, 2, v0")
    E("  ds_read_b32 v8, v7 offset:1024")
    E("  ds_read_b32 v9, v7 offset:1280")
    E("  ds_read_b32 v10, v7 offset:1536")
    E("  ds_read_b32 v11, v7 offset:1792")
    E("  s_waitcnt lgkmcnt(0)")
    E("  v_add_f32 v8, v8, v9")
    E("  v_add_f32 v10, v10, v11")
    E("  v_add_f32 v8, v8, v10")
    E("  s_lshl_b32 s16, s13, 8")
    E(f"  s_add_u32 s16, s16, {WS_ACCH}")
    E("  v_add_u32 v7, s16, v7")
    E("  global_atomic_add_f32 v7, v8, s[8:9]")
    E("L_o_end:")
    E("  s_endpgm")
    kdesc("oproj_kernel", 80)

def mlp():
    NW = 56
    kstart("mlp_kernel")
    E(f"  s_cmp_ge_u32 s2, {NW}")
    E("  s_cbranch_scc1 L_m_end")
    E("  s_load_dwordx2 s[4:5], s[0:1], 0")
    E("  s_load_dwordx2 s[6:7], s[0:1], 48")
    E("  s_load_dwordx2 s[10:11], s[0:1], 56")
    E("  s_load_dwordx2 s[12:13], s[0:1], 64")
    E("  s_load_dwordx2 s[14:15], s[0:1], 72")
    E("  s_load_dwordx2 s[16:17], s[0:1], 80")
    E("  s_load_dwordx2 s[18:19], s[0:1], 88")
    E("  s_load_dwordx2 s[8:9], s[0:1], 96")
    E("  v_and_b32 v1, 63, v0")
    E("  v_lshrrev_b32 v2, 6, v0")
    E("  v_and_b32 v3, 3, v0")
    E("  v_lshrrev_b32 v4, 2, v0")
    E("  s_movk_i32 s20, 3584")
    E("  v_mul_lo_u32 v5, v4, s20")
    E("  v_lshl_add_u32 v5, v3, 4, v5")
    E("  s_lshl_b32 s21, s2, 6")
    E("  v_add_u32 v5, s21, v5")
    E("  v_lshlrev_b32 v6, 13, v2")
    E("  v_lshl_add_u32 v6, v1, 4, v6")
    E("  s_lshl_b32 s22, s2, 15")
    E("  v_add_u32 v6, s22, v6")
    E("  v_lshlrev_b32 v7, 4, v1")
    E("  v_lshlrev_b32 v8, 5, v1")
    E(f"  v_add_u32 v8, {WS_ACCH}, v8")
    E("  v_and_b32 v9, 31, v0")
    E("  v_lshlrev_b32 v9, 1, v9")
    E("  v_add_u32 v9, s21, v9")
    E("  s_waitcnt lgkmcnt(0)")
    E("  global_load_ushort v10, v9, s[10:11]")
    E("  global_load_dwordx4 v[12:15], v7, s[4:5]")
    E("  global_load_dwordx4 v[16:19], v8, s[8:9]")
    E("  global_load_dwordx4 v[20:23], v8, s[8:9] offset:16")
    for i in range(8):
        E(f"  global_load_dwordx4 v[{40+4*i}:{43+4*i}], v5, s[6:7]")
        if i < 7:
            E(f"  v_add_u32 v5, {64*3584}, v5")
    for i in range(8):
        E(f"  global_load_dwordx4 v[{72+4*i}:{75+4*i}], v6, s[12:13] offset:{0}")
        if i < 7:
            E(f"  v_add_u32 v6, 1024, v6")
    E("  s_waitcnt vmcnt(16)")
    unpack8(12, 24)
    for k in range(8):
        bf16r(16+k, 32)
        E(f"  v_add_f32 v{16+k}, v{16+k}, v{24+k}")
        bf16r(16+k, 32)
        E(f"  v_mov_b32 v{24+k}, v{16+k}")
    layernorm8(16, 32)
    E("  v_lshlrev_b32 v36, 11, v2")
    E("  v_lshl_add_u32 v37, v1, 5, v36")
    E("  ds_write_b128 v37, v[16:19]")
    E("  ds_write_b128 v37, v[20:23] offset:16")
    E("  v_lshl_add_u32 v37, v4, 2, v36")
    E("  s_waitcnt lgkmcnt(0)")
    for i in range(8):
        E(f"  ds_read_b32 v{104+i}, v37 offset:{i*256}")
    for k in range(8):
        E(f"  v_mov_b32 v{112+k}, 0")
    E("  s_waitcnt lgkmcnt(0)")
    for i in range(8):
        E(f"  s_waitcnt vmcnt({15-i})")
        fma8(112, 40+4*i, 104+i, 32)
    for k in range(8):
        red_stage_dpp("v_add_f32", 112+k, 32, "row_ror:4")
        red_stage_dpp("v_add_f32", 112+k, 32, "row_ror:8")
        red_swap("v_add_f32", 112+k, 32, 16)
        red_swap("v_add_f32", 112+k, 32, 32)
    E("  v_lshlrev_b32 v36, 7, v2")
    E("  v_lshl_add_u32 v36, v1, 5, v36")
    E("  v_add_u32 v36, 8192, v36")
    E("  v_cmp_gt_u32 vcc, 4, v1")
    E("  s_and_saveexec_b64 s[24:25], vcc")
    E("  ds_write_b128 v36, v[112:115]")
    E("  ds_write_b128 v36, v[116:119] offset:16")
    E("  s_mov_b64 exec, s[24:25]")
    E("  s_waitcnt lgkmcnt(0)")
    E("  s_barrier")
    E("  v_cmp_gt_u32 vcc, 32, v0")
    E("  s_and_saveexec_b64 s[24:25], vcc")
    E("  v_lshlrev_b32 v36, 2, v0")
    E("  ds_read_b32 v32, v36 offset:8192")
    E("  ds_read_b32 v33, v36 offset:8320")
    E("  ds_read_b32 v34, v36 offset:8448")
    E("  ds_read_b32 v35, v36 offset:8576")
    E("  s_waitcnt vmcnt(0) lgkmcnt(0)")
    E("  v_add_f32 v32, v32, v33")
    E("  v_add_f32 v34, v34, v35")
    E("  v_add_f32 v32, v32, v34")
    bf16r(32, 33)
    E("  v_lshlrev_b32 v10, 16, v10")
    E("  v_add_f32 v32, v32, v10")
    bf16r(32, 33)
    E("  v_max_f32 v32, 0, v32")
    E("  v_mul_f32 v32, v32, v32")
    bf16r(32, 33)
    E("  ds_write_b32 v36, v32 offset:8704")
    E("  s_mov_b64 exec, s[24:25]")
    E("  s_waitcnt lgkmcnt(0)")
    E("  s_barrier")
    E("  v_lshlrev_b32 v36, 5, v2")
    for i in range(8):
        E(f"  ds_read_b32 v{104+i}, v36 offset:{8704+i*4}")
    for k in range(8):
        E(f"  v_mov_b32 v{112+k}, 0")
    E("  s_waitcnt vmcnt(0) lgkmcnt(0)")
    for i in range(8):
        fma8(112, 72+4*i, 104+i, 32)
    E("  v_lshlrev_b32 v36, 11, v2")
    E("  v_lshl_add_u32 v36, v1, 5, v36")
    E("  ds_write_b128 v36, v[112:115] offset:12288")
    E("  ds_write_b128 v36, v[116:119] offset:12304")
    E("  s_waitcnt lgkmcnt(0)")
    E("  s_barrier")
    E("  v_lshlrev_b32 v36, 3, v0")
    E("  ds_read_b64 v[32:33], v36 offset:12288")
    E("  ds_read_b64 v[34:35], v36 offset:14336")
    E("  ds_read_b64 v[112:113], v36 offset:16384")
    E("  ds_read_b64 v[114:115], v36 offset:18432")
    E("  s_waitcnt lgkmcnt(0)")
    E("  v_add_f32 v32, v32, v34")
    E("  v_add_f32 v33, v33, v35")
    E("  v_add_f32 v112, v112, v114")
    E("  v_add_f32 v113, v113, v115")
    E("  v_add_f32 v32, v32, v112")
    E("  v_add_f32 v33, v33, v113")
    E(f"  v_add_u32 v37, {WS_ACCO}, v36")
    E("  global_atomic_add_f32 v37, v32, s[8:9]")
    E("  global_atomic_add_f32 v37, v33, s[8:9] offset:4")
    E("  s_waitcnt vmcnt(0)")
    E("  s_barrier")
    E("  v_mov_b32 v38, 0")
    E("  v_mov_b32 v39, 1")
    E("  v_cmp_eq_u32 vcc, 0, v0")
    E("  s_and_saveexec_b64 s[24:25], vcc")
    E("  global_atomic_add v38, v38, v39, s[18:19] sc0")
    E("  s_waitcnt vmcnt(0)")
    E("  v_mov_b32 v39, 0")
    E("  ds_write_b32 v39, v38 offset:9000")
    E("  s_mov_b64 exec, s[24:25]")
    E("  s_waitcnt lgkmcnt(0)")
    E("  s_barrier")
    E("  v_mov_b32 v39, 0")
    E("  ds_read_b32 v38, v39 offset:9000")
    E("  s_waitcnt lgkmcnt(0)")
    E("  v_readfirstlane_b32 s26, v38")
    E(f"  s_cmp_lg_u32 s26, {NW-1}")
    E("  s_cbranch_scc1 L_m_end")
    E("  v_readfirstlane_b32 s27, v2")
    E("  s_cmp_lg_u32 s27, 0")
    E("  s_cbranch_scc1 L_m_end")
    E("  v_lshlrev_b32 v36, 5, v1")
    E(f"  v_add_u32 v36, {WS_ACCO}, v36")
    E("  v_mov_b32 v39, 0")
    for k in range(8):
        E(f"  global_atomic_add_f32 v{112+k}, v36, v39, s[8:9] offset:{4*k} sc0")
    E("  global_load_dwordx4 v[12:15], v7, s[14:15]")
    E("  s_waitcnt vmcnt(0)")
    unpack8(12, 40)
    for k in range(8):
        bf16r(112+k, 32)
        E(f"  v_add_f32 v{112+k}, v{112+k}, v{40+k}")
        bf16r(112+k, 32)
        E(f"  v_add_f32 v{112+k}, v{112+k}, v{24+k}")
    for k in range(4):
        E(f"  v_cvt_pk_bf16_f32 v{12+k}, v{112+2*k}, v{113+2*k}")
    E("  global_store_dwordx4 v7, v[12:15], s[16:17]")
    E("L_m_end:")
    E("  s_endpgm")
    kdesc("mlp_kernel", 128)

header()
qproj()
attn()
oproj()
mlp()
open(sys.argv[1] if len(sys.argv) > 1 else f"cdna_kernels/{NAME}.s", "w").write("\n".join(out) + "\n")
```

```python
import sys, os
KF = os.environ.get("KF","")
VFL = os.environ.get("VFL","")
KF = (" "+KF) if KF else ""
VFL = (" "+VFL) if VFL else ""

NAME = "sequential_preLN__gqa_block_cached__dense_activation_squared_relu__decode"
out = []
def E(s=""):
    out.append(s)

WS_Q = 0
WS_ACCH = 8192
WS_ACCO = 8192 + 2048
WS_ML = 16384
WS_O = 65536

LOG2E = "0x3fb8aa3b"
SCALE = "0x3db504f3"

def header():
    E("; generated by gen_v1.py")
    E("; @launch kernel=qproj_kernel grid=(64,1,1) block=(256,1,1) lds=12288")
    E("; @launch kernel=attn_kernel grid=(256,1,1) block=(512,1,1) lds=131072")
    E("; @launch kernel=oproj_kernel grid=(256,1,1) block=(256,1,1) lds=4096")
    E("; @launch kernel=mlp_kernel grid=(56,1,1) block=(256,1,1) lds=20480")
    E('.amdgcn_target "amdgcn-amd-amdhsa--gfx950"')
    E(".text")

def kstart(name):
    E(f".globl {name}")
    E(".p2align 8")
    E(f".type {name},@function")
    E(f"{name}:")

def kdesc(name, vgpr):
    acc = (vgpr + 3)//4*4
    E('.section .rodata,"a"')
    E(".p2align 6")
    E(f".amdhsa_kernel {name}")
    E(f"  .amdhsa_next_free_vgpr {vgpr}")
    E("  .amdhsa_next_free_sgpr 96")
    E(f"  .amdhsa_accum_offset {acc}")
    E("  .amdhsa_group_segment_fixed_size 0")
    E("  .amdhsa_kernarg_size 104")
    E("  .amdhsa_user_sgpr_count 2")
    E("  .amdhsa_user_sgpr_kernarg_segment_ptr 1")
    E("  .amdhsa_system_sgpr_workgroup_id_x 1")
    E(".end_amdhsa_kernel")
    E(".text")

STAMP = os.environ.get("STAMP","0")=="1"
def stamp(k, wsreg):
    if not STAMP: return
    E("  s_cmp_lg_u32 s2, 0")
    E(f"  s_cbranch_scc1 L_st{k}")
    E("  s_memrealtime s[90:91]")
    E("  s_waitcnt lgkmcnt(0)")
    E("  v_mov_b32 v120, s90")
    E(f"  v_mov_b32 v121, {0x100000+4*k}")
    E(f"  global_store_dword v121, v120, s[{wsreg}:{wsreg+1}]")
    E("  s_waitcnt vmcnt(0)")
    E(f"L_st{k}:")

def bf16r(v, t):
    E(f"  v_cvt_pk_bf16_f32 v{t}, v{v}, v{v}")
    E(f"  v_lshlrev_b32 v{v}, 16, v{t}")

def red_stage_dpp(op, v, t, ctrl):
    E("  s_nop 1")
    E(f"  v_mov_b32_dpp v{t}, v{v} {ctrl} row_mask:0xf bank_mask:0xf")
    E(f"  {op} v{v}, v{v}, v{t}")

def red_swap(op, v, t, which):
    E(f"  v_mov_b32 v{t}, v{v}")
    E("  s_nop 1")
    E(f"  v_permlane{which}_swap_b32 v{v}, v{t}")
    E(f"  {op} v{v}, v{v}, v{t}")

def wave_reduce(op, v, t):
    red_stage_dpp(op, v, t, "quad_perm:[1,0,3,2]")
    red_stage_dpp(op, v, t, "quad_perm:[2,3,0,1]")
    red_stage_dpp(op, v, t, "row_half_mirror")
    red_stage_dpp(op, v, t, "row_mirror")
    red_swap(op, v, t, 16)
    red_swap(op, v, t, 32)

def layernorm8(x, t):
    s, t1, t2, t3 = t, t+1, t+2, t+3
    E(f"  v_add_f32 v{s}, v{x}, v{x+1}")
    for i in range(2, 8):
        E(f"  v_add_f32 v{s}, v{s}, v{x+i}")
    wave_reduce("v_add_f32", s, t1)
    E(f"  v_mul_f32 v{s}, 0x3b000000, v{s}")
    E(f"  v_sub_f32 v{t1}, v{x}, v{s}")
    E(f"  v_mul_f32 v{t2}, v{t1}, v{t1}")
    for i in range(1, 8):
        E(f"  v_sub_f32 v{t1}, v{x+i}, v{s}")
        E(f"  v_fmac_f32 v{t2}, v{t1}, v{t1}")
    wave_reduce("v_add_f32", t2, t1)
    E(f"  v_mul_f32 v{t2}, 0x3b000000, v{t2}")
    bf16r(t2, t1)
    E(f"  v_add_f32 v{t2}, 0x3727c5ac, v{t2}")
    bf16r(t2, t1)
    E(f"  v_sqrt_f32 v{t2}, v{t2}")
    E("  s_nop 0")
    bf16r(t2, t1)
    E(f"  v_rcp_f32 v{t2}, v{t2}")
    bf16r(s, t1)
    for i in range(8):
        E(f"  v_sub_f32 v{x+i}, v{x+i}, v{s}")
        bf16r(x+i, t1)
        E(f"  v_mul_f32 v{x+i}, v{x+i}, v{t2}")
        bf16r(x+i, t1)

def unpack8(src, dst):
    for k in range(4):
        E(f"  v_lshlrev_b32 v{dst+2*k}, 16, v{src+k}")
        E(f"  v_and_b32 v{dst+2*k+1}, 0xffff0000, v{src+k}")

def fma8(acc, w, sc, t):
    for k in range(4):
        E(f"  v_lshlrev_b32 v{t}, 16, v{w+k}")
        E(f"  v_fmac_f32 v{acc+2*k}, v{sc}, v{t}")
        E(f"  v_and_b32 v{t}, 0xffff0000, v{w+k}")
        E(f"  v_fmac_f32 v{acc+2*k+1}, v{sc}, v{t}")

def qproj():
    kstart("qproj_kernel")
    E("  s_cmp_ge_u32 s2, 64")
    E("  s_cbranch_scc1 L_q_end")
    E("  s_load_dwordx2 s[4:5], s[0:1], 0")
    E("  s_load_dwordx2 s[6:7], s[0:1], 24")
    E("  s_load_dwordx2 s[8:9], s[0:1], 96")
    E("  v_and_b32 v1, 63, v0")
    E("  v_lshrrev_b32 v2, 6, v0")
    E("  v_and_b32 v3, 7, v0")
    E("  v_lshrrev_b32 v4, 3, v0")
    E("  v_lshlrev_b32 v5, 13, v4")
    E("  v_lshl_add_u32 v5, v3, 4, v5")
    E("  s_lshl_b32 s3, s2, 7")
    E("  v_add_u32 v5, s3, v5")
    E("  v_lshlrev_b32 v6, 4, v1")
    E("  s_waitcnt lgkmcnt(0)")
    stamp(0, 8)
    E("  global_load_dwordx4 v[8:11], v6, s[4:5]")
    for i in range(16):
        E(f"  global_load_dwordx4 v[{32+4*i}:{35+4*i}], v5, s[6:7]")
        if i < 15:
            E(f"  v_add_u32 v5, 0x40000, v5")
    E("  s_cmp_lg_u32 s2, 0")
    E("  s_cbranch_scc1 L_q_nz")
    E("  v_mov_b32 v12, 0")
    E("  v_mov_b32 v13, 0")
    E("  v_mov_b32 v14, 0")
    E("  v_mov_b32 v15, 0")
    E("  v_lshlrev_b32 v7, 4, v0")
    E(f"  v_add_u32 v7, {WS_ACCH}, v7")
    E("  global_store_dwordx4 v7, v[12:15], s[8:9]")
    E("L_q_nz:")
    E("  s_waitcnt vmcnt(16)")
    unpack8(8, 16)
    layernorm8(16, 24)
    E("  v_lshlrev_b32 v7, 11, v2")
    E("  v_lshl_add_u32 v28, v1, 5, v7")
    E("  ds_write_b128 v28, v[16:19]")
    E("  ds_write_b128 v28, v[20:23] offset:16")
    E("  v_lshl_add_u32 v28, v4, 2, v7")
    E("  s_waitcnt lgkmcnt(0)")
    for i in range(16):
        E(f"  ds_read_b32 v{96+i}, v28 offset:{i*128}")
    for k in range(8):
        E(f"  v_mov_b32 v{112+k}, 0")
    E("  s_waitcnt lgkmcnt(0)")
    for i in range(16):
        E(f"  s_waitcnt vmcnt({15-i})")
        fma8(112, 32+4*i, 96+i, 24)
    for k in range(8):
        red_stage_dpp("v_add_f32", 112+k, 24, "row_ror:8")
        red_swap("v_add_f32", 112+k, 24, 16)
        red_swap("v_add_f32", 112+k, 24, 32)
    E("  v_lshlrev_b32 v7, 8, v2")
    E("  v_lshl_add_u32 v7, v1, 5, v7")
    E("  v_add_u32 v7, 8192, v7")
    E("  v_cmp_gt_u32 vcc, 8, v1")
    E("  s_and_saveexec_b64 s[10:11], vcc")
    E("  ds_write_b128 v7, v[112:115]")
    E("  ds_write_b128 v7, v[116:119] offset:16")
    E("  s_mov_b64 exec, s[10:11]")
    E("  s_waitcnt lgkmcnt(0)")
    E("  s_barrier")
    E("  v_cmp_gt_u32 vcc, 64, v0")
    E("  s_and_saveexec_b64 s[10:11], vcc")
    E("  s_cbranch_execz L_q_end")
    E("  v_lshlrev_b32 v7, 2, v0")
    E("  ds_read_b32 v8, v7 offset:8192")
    E("  ds_read_b32 v9, v7 offset:8448")
    E("  ds_read_b32 v10, v7 offset:8704")
    E("  ds_read_b32 v11, v7 offset:8960")
    E("  s_waitcnt lgkmcnt(0)")
    E("  v_add_f32 v8, v8, v9")
    E("  v_add_f32 v10, v10, v11")
    E("  v_add_f32 v8, v8, v10")
    E("  v_cvt_pk_bf16_f32 v8, v8, v8")
    E("  v_lshlrev_b32 v7, 1, v0")
    E("  v_add_u32 v7, s3, v7")
    E("  global_store_short v7, v8, s[8:9]")
    E("L_q_end:")
    E("  s_endpgm")
    kdesc("qproj_kernel", 128)

def attn():
    kstart("attn_kernel")
    Q, K0, K1, O, S, P, VF, TA = 4, 20, 52, 84, 116, 124, 128, 144
    KO0, KO1, VO = 152, 153, 154
    M, L, T = 158, 159, 160
    E("  s_cmp_ge_u32 s2, 256")
    E("  s_cbranch_scc1 L_a_end")
    E("  s_load_dwordx2 s[4:5], s[0:1], 8")
    E("  s_load_dwordx2 s[6:7], s[0:1], 16")
    E("  s_load_dwordx2 s[8:9], s[0:1], 96")
    E("  v_and_b32 v1, 63, v0")
    E("  v_lshrrev_b32 v2, 6, v0")
    E("  s_nop 0")
    E("  v_readfirstlane_b32 s12, v2")
    E("  s_lshr_b32 s13, s2, 5")
    E("  s_and_b32 s14, s2, 31")
    E("  v_and_b32 v2, 15, v1")
    E("  v_lshrrev_b32 v3, 4, v1")
    E("  v_and_b32 v160, 3, v2")
    E("  v_lshlrev_b32 v160, 8, v160")
    E("  v_lshl_add_u32 v160, v3, 4, v160")
    E("  s_lshl_b32 s15, s13, 10")
    E("  v_add_u32 v160, s15, v160")
    E(f"  v_lshlrev_b32 v{KO0}, 8, v2")
    E(f"  v_lshl_add_u32 v{KO0}, v3, 4, v{KO0}")
    E(f"  v_add_u32 v{KO1}, 4096, v{KO0}")
    E(f"  v_lshlrev_b32 v161, 1, v3")
    E(f"  v_xor_b32 v162, v2, v161")
    E(f"  v_lshlrev_b32 v162, 4, v162")
    E(f"  v_lshl_add_u32 v{VO}, v3, 8, v162")
    E(f"  v_lshlrev_b32 v162, 4, v2")
    E(f"  v_lshlrev_b32 v163, 5, v3")
    E(f"  v_xor_b32 v162, v162, v163")
    E(f"  v_xor_b32 v162, 128, v162")
    E(f"  v_lshl_add_u32 v{VO+1}, v3, 8, v162")
    E(f"  v_add_u32 v{VO+2}, 4096, v{VO}")
    E(f"  v_add_u32 v{VO+3}, 4096, v{VO+1}")
    E("  v_lshrrev_b32 v161, 2, v2")
    E("  v_lshl_add_u32 v161, v3, 2, v161")
    E("  v_and_b32 v162, 7, v161")
    E("  v_and_b32 v163, 3, v2")
    E("  v_lshlrev_b32 v164, 8, v161")
    E("  v_lshl_add_u32 v164, v163, 3, v164")
    E("  s_lshl_b32 s16, s12, 14")
    E("  v_add_u32 v164, s16, v164")
    for nb in range(8):
        E(f"  v_xor_b32 v165, {nb}, v162")
        E(f"  v_lshl_add_u32 v{TA+nb}, v165, 5, v164")
    E("  s_lshl_b32 s17, s13, 24")
    E("  s_lshl_b32 s18, s14, 19")
    E("  s_add_u32 s17, s17, s18")
    E("  s_lshl_b32 s18, s12, 13")
    E("  s_add_u32 s17, s17, s18")
    E("  s_waitcnt lgkmcnt(0)")
    stamp(1, 8)
    E("  s_add_u32 s20, s4, s17")
    E("  s_addc_u32 s21, s5, 0")
    E("  s_add_u32 s22, s6, s17")
    E("  s_addc_u32 s23, s7, 0")
    for j in range(4):
        E(f"  global_load_dwordx4 v[{Q+4*j}:{Q+4*j+3}], v160, s[8:9] offset:{j*64}")
    for k in range(32):
        E(f"  v_mov_b32 v{O+k}, 0")
    E(f"  v_mov_b32 v{M}, 0xf149f2ca")
    E(f"  v_mov_b32 v{L}, 0")

    def issue(t):
        kb = K0 if t % 2 == 0 else K1
        for blk in range(2):
            for j in range(4):
                r = kb + blk*16 + j*4
                E(f"  global_load_dwordx4 v[{r}:{r+3}], v{KO0+blk}, s[20:21] offset:{j*64}{KF}")
        for half in range(2):
            E(f"  s_add_u32 s24, s16, {(t%2)*8192 + half*4096}")
            E("  s_mov_b32 m0, s24")
            E("  s_nop 0")
            for ii in range(4):
                i = half*4 + ii
                vo = VO + (i % 2) + 2*half
                off = (ii//2)*2048 + (1024 if i % 2 else 0)
                goff = (ii//2)*2048
                if i % 2 == 0:
                    E(f"  global_load_lds_dwordx4 v{vo}, s[22:23] offset:{off}{VFL}")
                else:
                    E(f"  global_load_lds_dwordx4 v{vo}, s[22:23] offset:{off}{VFL}")
        E("  s_add_u32 s20, s20, 0x10000")
        E("  s_addc_u32 s21, s21, 0")
        E("  s_add_u32 s22, s22, 0x10000")
        E("  s_addc_u32 s23, s23, 0")

    issue(0)
    for t in range(8):
        if t < 7:
            issue(t+1)
            E("  s_waitcnt vmcnt(16)")
        else:
            E("  s_waitcnt vmcnt(0)")
        kb = K0 if t % 2 == 0 else K1
        for blk in range(2):
            for j in range(4):
                r = kb + blk*16 + j*4
                c = "0" if j == 0 else f"v[{S+4*blk}:{S+4*blk+3}]"
                E(f"  v_mfma_f32_16x16x32_bf16 v[{S+4*blk}:{S+4*blk+3}], v[{r}:{r+3}], v[{Q+4*j}:{Q+4*j+3}], {c}")
        sl = (t % 2)*8192
        def trreads(nb0):
            for q in range(4):
                nb = nb0 + q
                E(f"  ds_read_b64_tr_b16 v[{VF+4*q}:{VF+4*q+1}], v{TA+nb} offset:{sl}")
                E(f"  ds_read_b64_tr_b16 v[{VF+4*q+2}:{VF+4*q+3}], v{TA+nb} offset:{sl+4096}")
        trreads(0)
        E("  s_nop 7")
        for k in range(8):
            bf16r(S+k, T)
            E(f"  v_mul_f32 v{S+k}, {SCALE}, v{S+k}")
            bf16r(S+k, T)
        E(f"  v_max3_f32 v{T}, v{S}, v{S+1}, v{S+2}")
        E(f"  v_max3_f32 v{T}, v{S+3}, v{S+4}, v{T}")
        E(f"  v_max3_f32 v{T}, v{S+5}, v{S+6}, v{T}")
        E(f"  v_max_f32 v{T}, v{S+7}, v{T}")
        red_swap("v_max_f32", T, T+1, 16)
        red_swap("v_max_f32", T, T+1, 32)
        E(f"  v_max_f32 v{T}, v{T}, v{M}")
        E(f"  v_sub_f32 v{T+1}, v{M}, v{T}")
        E(f"  v_mul_f32 v{T+1}, {LOG2E}, v{T+1}")
        E(f"  v_exp_f32 v{T+1}, v{T+1}")
        E(f"  v_mov_b32 v{M}, v{T}")
        for k in range(8):
            E(f"  v_sub_f32 v{S+k}, v{S+k}, v{T}")
            E(f"  v_mul_f32 v{S+k}, {LOG2E}, v{S+k}")
            E(f"  v_exp_f32 v{S+k}, v{S+k}")
        E(f"  v_mul_f32 v{L}, v{L}, v{T+1}")
        for k in range(4):
            E(f"  v_cvt_pk_bf16_f32 v{P+k}, v{S+2*k}, v{S+2*k+1}")
        for k in range(8):
            E(f"  v_add_f32 v{L}, v{L}, v{S+k}")
        for i in range(4):
            E(f"  v_readlane_b32 s{30+i}, v{T+1}, {i}")
        E("  s_nop 1")
        for nb in range(8):
            for i in range(4):
                E(f"  v_mul_f32 v{O+4*nb+i}, s{30+i}, v{O+4*nb+i}")
        E("  s_waitcnt lgkmcnt(0)")
        for q in range(4):
            E(f"  v_mfma_f32_16x16x32_bf16 v[{O+4*q}:{O+4*q+3}], v[{P}:{P+3}], v[{VF+4*q}:{VF+4*q+3}], v[{O+4*q}:{O+4*q+3}]")
        trreads(4)
        E("  s_waitcnt lgkmcnt(0)")
        for q in range(4):
            nb = 4 + q
            E(f"  v_mfma_f32_16x16x32_bf16 v[{O+4*nb}:{O+4*nb+3}], v[{P}:{P+3}], v[{VF+4*q}:{VF+4*q+3}], v[{O+4*nb}:{O+4*nb+3}]")
        E("  s_nop 7")
    red_swap("v_add_f32", L, T, 16)
    red_swap("v_add_f32", L, T, 32)
    E("  s_nop 7")
    E(f"  v_lshl_add_u32 v{T}, v1, 2, s16")
    E(f"  v_lshl_add_u32 v{T+1}, v1, 3, s16")
    E("  v_cmp_gt_u32 vcc, 16, v1")
    E("  s_and_saveexec_b64 s[26:27], vcc")
    for nb in range(8):
        for i in range(4):
            E(f"  ds_write_b32 v{T}, v{O+4*nb+i} offset:{i*512 + nb*64}")
    E("  s_mov_b64 exec, s[26:27]")
    E("  v_cmp_gt_u32 vcc, 4, v1")
    E("  s_and_saveexec_b64 s[26:27], vcc")
    E(f"  ds_write_b64 v{T+1}, v[{M}:{L}] offset:2048")
    E("  s_mov_b64 exec, s[26:27]")
    E("  s_waitcnt lgkmcnt(0)")
    E("  s_barrier")
    E("  v_lshrrev_b32 v2, 7, v0")
    E("  v_lshlrev_b32 v3, 3, v2")
    E("  v_lshlrev_b32 v4, 2, v0")
    E("  v_add_u32 v12, 0x10000, v3")
    E("  v_add_u32 v13, 0x10000, v4")
    for w in range(8):
        E(f"  ds_read_b64 v[{20+2*w}:{21+2*w}], v{3 if w<4 else 12} offset:{(w%4)*16384+2048}")
    for w in range(8):
        E(f"  ds_read_b32 v{40+w}, v{4 if w<4 else 13} offset:{(w%4)*16384}")
    E("  s_waitcnt lgkmcnt(0)")
    E("  v_max3_f32 v5, v20, v22, v24")
    E("  v_max3_f32 v5, v26, v28, v5")
    E("  v_max3_f32 v5, v30, v32, v5")
    E("  v_max_f32 v5, v34, v5")
    E("  v_mov_b32 v6, 0")
    E("  v_mov_b32 v7, 0")
    for w in range(8):
        E(f"  v_sub_f32 v8, v{20+2*w}, v5")
        E(f"  v_mul_f32 v8, {LOG2E}, v8")
        E(f"  v_exp_f32 v8, v8")
        E("  s_nop 0")
        E(f"  v_fmac_f32 v6, v8, v{40+w}")
        E(f"  v_fmac_f32 v7, v8, v{21+2*w}")
    E("  s_lshl_b32 s24, s13, 2")
    E("  v_add_u32 v9, s24, v2")
    E("  v_lshlrev_b32 v9, 5, v9")
    E("  v_add_u32 v9, s14, v9")
    E("  v_and_b32 v10, 127, v0")
    E("  v_lshlrev_b32 v11, 9, v9")
    E("  v_lshl_add_u32 v11, v10, 2, v11")
    E(f"  v_add_u32 v11, {WS_O}, v11")
    E("  global_store_dword v11, v6, s[8:9]")
    E("  v_cmp_eq_u32 vcc, 0, v10")
    E("  s_and_saveexec_b64 s[26:27], vcc")
    E("  v_lshlrev_b32 v11, 3, v9")
    E(f"  v_add_u32 v11, {WS_ML}, v11")
    E("  v_mov_b32 v6, v5")
    E("  global_store_dwordx2 v11, v[6:7], s[8:9]")
    E("L_a_end:")
    E("  s_endpgm")
    kdesc("attn_kernel", 176)

def oproj():
    kstart("oproj_kernel")
    E("  s_cmp_ge_u32 s2, 256")
    E("  s_cbranch_scc1 L_o_end")
    E("  s_load_dwordx2 s[6:7], s[0:1], 32")
    E("  s_load_dwordx2 s[8:9], s[0:1], 96")
    E("  s_lshr_b32 s12, s2, 3")
    E("  s_and_b32 s13, s2, 7")
    E("  v_and_b32 v1, 63, v0")
    E("  v_lshrrev_b32 v2, 6, v0")
    E("  s_nop 0")
    E("  v_readfirstlane_b32 s14, v2")
    E("  v_and_b32 v3, 7, v0")
    E("  v_lshrrev_b32 v4, 3, v0")
    E("  s_lshl_b32 s15, s12, 17")
    E("  s_lshl_b32 s16, s13, 7")
    E("  s_add_u32 s15, s15, s16")
    E("  v_lshlrev_b32 v5, 10, v4")
    E("  v_lshl_add_u32 v5, v3, 4, v5")
    E("  v_add_u32 v5, s15, v5")
    E("  v_and_b32 v6, 31, v1")
    E("  v_lshlrev_b32 v6, 3, v6")
    E("  s_lshl_b32 s17, s12, 8")
    E(f"  s_add_u32 s17, s17, {WS_ML}")
    E("  v_add_u32 v6, s17, v6")
    E("  v_and_b32 v7, 127, v0")
    E("  v_lshrrev_b32 v8, 7, v0")
    E("  v_lshlrev_b32 v9, 13, v8")
    E("  v_lshl_add_u32 v9, v7, 2, v9")
    E("  s_lshl_b32 s18, s12, 14")
    E(f"  s_add_u32 s18, s18, {WS_O}")
    E("  v_add_u32 v9, s18, v9")
    E("  s_waitcnt lgkmcnt(0)")
    stamp(2, 8)
    E("  global_load_dwordx2 v[10:11], v6, s[8:9]")
    for k in range(8):
        E(f"  global_load_dword v{48+k}, v9, s[8:9] offset:{k*512}")
    E("  v_add_u32 v9, 4096, v9")
    for k in range(8):
        E(f"  global_load_dword v{56+k}, v9, s[8:9] offset:{k*512}")
    for i in range(4):
        E(f"  global_load_dwordx4 v[{32+4*i}:{35+4*i}], v5, s[6:7]")
        if i < 3:
            E("  v_add_u32 v5, 0x8000, v5")
    E("  s_waitcnt vmcnt(20)")
    E("  v_mov_b32 v12, v10")
    wave_reduce("v_max_f32", 12, 13)
    E("  v_sub_f32 v12, v10, v12")
    E(f"  v_mul_f32 v12, {LOG2E}, v12")
    E("  v_exp_f32 v12, v12")
    E("  s_nop 0")
    E("  v_mul_f32 v13, v12, v11")
    E("  v_cmp_gt_u32 vcc, 32, v1")
    E("  s_nop 1")
    E("  v_cndmask_b32 v13, 0, v13, vcc")
    wave_reduce("v_add_f32", 13, 14)
    E("  v_rcp_f32 v13, v13")
    E("  s_nop 0")
    E("  v_mul_f32 v12, v12, v13")
    E("  s_lshr_b32 s19, s14, 1")
    E("  s_lshl_b32 s19, s19, 4")
    E("  v_mov_b32 v14, 0")
    E("  s_waitcnt vmcnt(4)")
    for k in range(16):
        E(f"  s_add_u32 s20, s19, {k}")
        E("  s_nop 3")
        E("  v_readlane_b32 s21, v12, s20")
        E("  s_nop 1")
        E(f"  v_fmac_f32 v14, s21, v{48+k}")
    E("  v_lshlrev_b32 v15, 2, v0")
    E("  ds_write_b32 v15, v14")
    E("  s_waitcnt lgkmcnt(0)")
    E("  s_barrier")
    E("  v_lshlrev_b32 v15, 2, v4")
    for i in range(4):
        E(f"  ds_read_b32 v{16+i}, v15 offset:{i*128}")
        E(f"  ds_read_b32 v{20+i}, v15 offset:{i*128+512}")
    for k in range(8):
        E(f"  v_mov_b32 v{64+k}, 0")
    E("  s_waitcnt lgkmcnt(0)")
    for i in range(4):
        E(f"  v_add_f32 v{16+i}, v{16+i}, v{20+i}")
        bf16r(16+i, 24)
    E("  s_waitcnt vmcnt(0)")
    for i in range(4):
        fma8(64, 32+4*i, 16+i, 24)
    for k in range(8):
        red_stage_dpp("v_add_f32", 64+k, 24, "row_ror:8")
        red_swap("v_add_f32", 64+k, 24, 16)
        red_swap("v_add_f32", 64+k, 24, 32)
    E("  v_lshlrev_b32 v7, 8, v2")
    E("  v_lshl_add_u32 v7, v1, 5, v7")
    E("  v_add_u32 v7, 1024, v7")
    E("  v_cmp_gt_u32 vcc, 8, v1")
    E("  s_and_saveexec_b64 s[10:11], vcc")
    E("  ds_write_b128 v7, v[64:67]")
    E("  ds_write_b128 v7, v[68:71] offset:16")
    E("  s_mov_b64 exec, s[10:11]")
    E("  s_waitcnt lgkmcnt(0)")
    E("  s_barrier")
    E("  v_cmp_gt_u32 vcc, 64, v0")
    E("  s_and_saveexec_b64 s[10:11], vcc")
    E("  s_cbranch_execz L_o_end")
    E("  v_lshlrev_b32 v7, 2, v0")
    E("  ds_read_b32 v8, v7 offset:1024")
    E("  ds_read_b32 v9, v7 offset:1280")
    E("  ds_read_b32 v10, v7 offset:1536")
    E("  ds_read_b32 v11, v7 offset:1792")
    E("  s_waitcnt lgkmcnt(0)")
    E("  v_add_f32 v8, v8, v9")
    E("  v_add_f32 v10, v10, v11")
    E("  v_add_f32 v8, v8, v10")
    E("  s_lshl_b32 s16, s13, 8")
    E(f"  s_add_u32 s16, s16, {WS_ACCH}")
    E("  v_add_u32 v7, s16, v7")
    E("  global_atomic_add_f32 v7, v8, s[8:9]")
    E("L_o_end:")
    E("  s_endpgm")
    kdesc("oproj_kernel", 128)

def mlp():
    NW = 56
    kstart("mlp_kernel")
    E(f"  s_cmp_ge_u32 s2, {NW}")
    E("  s_cbranch_scc1 L_m_end")
    E("  s_load_dwordx2 s[4:5], s[0:1], 0")
    E("  s_load_dwordx2 s[6:7], s[0:1], 48")
    E("  s_load_dwordx2 s[10:11], s[0:1], 56")
    E("  s_load_dwordx2 s[12:13], s[0:1], 64")
    E("  s_load_dwordx2 s[14:15], s[0:1], 72")
    E("  s_load_dwordx2 s[16:17], s[0:1], 80")
    E("  s_load_dwordx2 s[18:19], s[0:1], 88")
    E("  s_load_dwordx2 s[8:9], s[0:1], 96")
    E("  v_and_b32 v1, 63, v0")
    E("  v_lshrrev_b32 v2, 6, v0")
    E("  v_and_b32 v3, 3, v0")
    E("  v_lshrrev_b32 v4, 2, v0")
    E("  s_movk_i32 s20, 3584")
    E("  v_mul_lo_u32 v5, v4, s20")
    E("  v_lshl_add_u32 v5, v3, 4, v5")
    E("  s_lshl_b32 s21, s2, 6")
    E("  v_add_u32 v5, s21, v5")
    E("  v_lshlrev_b32 v6, 13, v2")
    E("  v_lshl_add_u32 v6, v1, 4, v6")
    E("  s_lshl_b32 s22, s2, 15")
    E("  v_add_u32 v6, s22, v6")
    E("  v_lshlrev_b32 v7, 4, v1")
    E("  v_lshlrev_b32 v8, 5, v1")
    E(f"  v_add_u32 v8, {WS_ACCH}, v8")
    E("  v_and_b32 v9, 31, v0")
    E("  v_lshlrev_b32 v9, 1, v9")
    E("  v_add_u32 v9, s21, v9")
    E("  s_waitcnt lgkmcnt(0)")
    stamp(3, 8)
    E("  global_load_ushort v10, v9, s[10:11]")
    E("  global_load_dwordx4 v[12:15], v7, s[4:5]")
    E("  global_load_dwordx4 v[16:19], v8, s[8:9]")
    E("  global_load_dwordx4 v[20:23], v8, s[8:9] offset:16")
    for i in range(8):
        E(f"  global_load_dwordx4 v[{40+4*i}:{43+4*i}], v5, s[6:7]")
        if i < 7:
            E(f"  v_add_u32 v5, {64*3584}, v5")
    for i in range(8):
        E(f"  global_load_dwordx4 v[{72+4*i}:{75+4*i}], v6, s[12:13] offset:{0}")
        if i < 7:
            E(f"  v_add_u32 v6, 1024, v6")
    E("  s_waitcnt vmcnt(16)")
    unpack8(12, 24)
    for k in range(8):
        bf16r(16+k, 32)
        E(f"  v_add_f32 v{16+k}, v{16+k}, v{24+k}")
        bf16r(16+k, 32)
        E(f"  v_mov_b32 v{24+k}, v{16+k}")
    layernorm8(16, 32)
    E("  v_lshlrev_b32 v36, 11, v2")
    E("  v_lshl_add_u32 v37, v1, 5, v36")
    E("  ds_write_b128 v37, v[16:19]")
    E("  ds_write_b128 v37, v[20:23] offset:16")
    E("  v_lshl_add_u32 v37, v4, 2, v36")
    E("  s_waitcnt lgkmcnt(0)")
    for i in range(8):
        E(f"  ds_read_b32 v{104+i}, v37 offset:{i*256}")
    for k in range(8):
        E(f"  v_mov_b32 v{112+k}, 0")
    E("  s_waitcnt lgkmcnt(0)")
    for i in range(8):
        E(f"  s_waitcnt vmcnt({15-i})")
        fma8(112, 40+4*i, 104+i, 32)
    for k in range(8):
        red_stage_dpp("v_add_f32", 112+k, 32, "row_ror:4")
        red_stage_dpp("v_add_f32", 112+k, 32, "row_ror:8")
        red_swap("v_add_f32", 112+k, 32, 16)
        red_swap("v_add_f32", 112+k, 32, 32)
    E("  v_lshlrev_b32 v36, 7, v2")
    E("  v_lshl_add_u32 v36, v1, 5, v36")
    E("  v_add_u32 v36, 8192, v36")
    E("  v_cmp_gt_u32 vcc, 4, v1")
    E("  s_and_saveexec_b64 s[24:25], vcc")
    E("  ds_write_b128 v36, v[112:115]")
    E("  ds_write_b128 v36, v[116:119] offset:16")
    E("  s_mov_b64 exec, s[24:25]")
    E("  s_waitcnt lgkmcnt(0)")
    E("  s_barrier")
    E("  v_cmp_gt_u32 vcc, 32, v0")
    E("  s_and_saveexec_b64 s[24:25], vcc")
    E("  v_lshlrev_b32 v36, 2, v0")
    E("  ds_read_b32 v32, v36 offset:8192")
    E("  ds_read_b32 v33, v36 offset:8320")
    E("  ds_read_b32 v34, v36 offset:8448")
    E("  ds_read_b32 v35, v36 offset:8576")
    E("  s_waitcnt vmcnt(0) lgkmcnt(0)")
    E("  v_add_f32 v32, v32, v33")
    E("  v_add_f32 v34, v34, v35")
    E("  v_add_f32 v32, v32, v34")
    bf16r(32, 33)
    E("  v_lshlrev_b32 v10, 16, v10")
    E("  v_add_f32 v32, v32, v10")
    bf16r(32, 33)
    E("  v_max_f32 v32, 0, v32")
    E("  v_mul_f32 v32, v32, v32")
    bf16r(32, 33)
    E("  ds_write_b32 v36, v32 offset:8704")
    E("  s_mov_b64 exec, s[24:25]")
    E("  s_waitcnt lgkmcnt(0)")
    E("  s_barrier")
    E("  v_lshlrev_b32 v36, 5, v2")
    for i in range(8):
        E(f"  ds_read_b32 v{104+i}, v36 offset:{8704+i*4}")
    for k in range(8):
        E(f"  v_mov_b32 v{112+k}, 0")
    E("  s_waitcnt vmcnt(0) lgkmcnt(0)")
    for i in range(8):
        fma8(112, 72+4*i, 104+i, 32)
    E("  v_lshlrev_b32 v36, 11, v2")
    E("  v_lshl_add_u32 v36, v1, 5, v36")
    E("  ds_write_b128 v36, v[112:115] offset:12288")
    E("  ds_write_b128 v36, v[116:119] offset:12304")
    E("  s_waitcnt lgkmcnt(0)")
    E("  s_barrier")
    E("  v_lshlrev_b32 v36, 3, v0")
    E("  ds_read_b64 v[32:33], v36 offset:12288")
    E("  ds_read_b64 v[34:35], v36 offset:14336")
    E("  ds_read_b64 v[112:113], v36 offset:16384")
    E("  ds_read_b64 v[114:115], v36 offset:18432")
    E("  s_waitcnt lgkmcnt(0)")
    E("  v_add_f32 v32, v32, v34")
    E("  v_add_f32 v33, v33, v35")
    E("  v_add_f32 v112, v112, v114")
    E("  v_add_f32 v113, v113, v115")
    E("  v_add_f32 v32, v32, v112")
    E("  v_add_f32 v33, v33, v113")
    E(f"  v_add_u32 v37, {WS_ACCO}, v36")
    E("  global_atomic_add_f32 v37, v32, s[8:9]")
    E("  global_atomic_add_f32 v37, v33, s[8:9] offset:4")
    E("  s_waitcnt vmcnt(0)")
    E("  s_barrier")
    E("  v_mov_b32 v38, 0")
    E("  v_mov_b32 v39, 1")
    E("  v_cmp_eq_u32 vcc, 0, v0")
    E("  s_and_saveexec_b64 s[24:25], vcc")
    E("  global_atomic_add v38, v38, v39, s[18:19] sc0")
    E("  s_waitcnt vmcnt(0)")
    E("  v_mov_b32 v39, 0")
    E("  ds_write_b32 v39, v38 offset:9000")
    E("  s_mov_b64 exec, s[24:25]")
    E("  s_waitcnt lgkmcnt(0)")
    E("  s_barrier")
    E("  v_mov_b32 v39, 0")
    E("  ds_read_b32 v38, v39 offset:9000")
    E("  s_waitcnt lgkmcnt(0)")
    E("  v_readfirstlane_b32 s26, v38")
    E(f"  s_cmp_lg_u32 s26, {NW-1}")
    E("  s_cbranch_scc1 L_m_end")
    E("  v_readfirstlane_b32 s27, v2")
    E("  s_cmp_lg_u32 s27, 0")
    E("  s_cbranch_scc1 L_m_end")
    E("  v_lshlrev_b32 v36, 5, v1")
    E(f"  v_add_u32 v36, {WS_ACCO}, v36")
    E("  v_mov_b32 v39, 0")
    for k in range(8):
        E(f"  global_atomic_add_f32 v{112+k}, v36, v39, s[8:9] offset:{4*k} sc0")
    E("  global_load_dwordx4 v[12:15], v7, s[14:15]")
    E("  s_waitcnt vmcnt(0)")
    unpack8(12, 40)
    for k in range(8):
        bf16r(112+k, 32)
        E(f"  v_add_f32 v{112+k}, v{112+k}, v{40+k}")
        bf16r(112+k, 32)
        E(f"  v_add_f32 v{112+k}, v{112+k}, v{24+k}")
    for k in range(4):
        E(f"  v_cvt_pk_bf16_f32 v{12+k}, v{112+2*k}, v{113+2*k}")
    E("  global_store_dwordx4 v7, v[12:15], s[16:17]")
    if STAMP:
        E("  s_waitcnt vmcnt(0)")
        E("  s_memrealtime s[90:91]")
        E("  v_mov_b32 v121, 0x100000")
        E("  global_load_dwordx4 v[112:115], v121, s[8:9] sc0 sc1")
        E("  s_waitcnt vmcnt(0) lgkmcnt(0)")
        E("  v_mov_b32 v116, s90")
        E("  v_mov_b32 v121, 4")
        E("  global_store_dwordx4 v121, v[112:115], s[18:19]")
        E("  global_store_dword v121, v116, s[18:19] offset:16")
    E("L_m_end:")
    E("  s_endpgm")
    kdesc("mlp_kernel", 128)

header()
qproj()
attn()
oproj()
mlp()
open(sys.argv[1] if len(sys.argv) > 1 else f"cdna_kernels/{NAME}.s", "w").write("\n".join(out) + "\n")
```
